```python
import torch

def _softmax(x, axis=-1):
    return torch.softmax(x, dim=axis)
def _gelu(x):
    return torch.nn.functional.gelu(x, approximate="tanh")
def _silu(x):
    return torch.nn.functional.silu(x)
def _sigmoid(x):
    return torch.sigmoid(x)
def _layernorm(x, axis=-1, eps=1e-5):
    m = x.mean(dim=axis, keepdim=True)
    v = x.var(dim=axis, keepdim=True, unbiased=False)
    return (x - m) / torch.sqrt(v + eps)
def _scatter_add(tgt, idx, src, axis=0):
    return tgt.clone().index_add_(axis, idx, src)
def _segment_sum(src, seg, n):
    out = torch.zeros((n,) + src.shape[1:], dtype=src.dtype)
    return out.index_add_(0, seg, src)
def _pad(x, pw):
    flat = tuple(v for pair in reversed(pw) for v in pair)
    return torch.nn.functional.pad(x, flat)

kernel_name = 'recurrent_scan__spectral_fnet__dense_activation_silu__prompt'

def setup_inputs():

    _w = (lambda a: (lambda t: t.to(torch.bfloat16) if t.is_floating_point() else t)(torch.as_tensor(a)))
    def _A_setup():
        B, S, D = 1, 2048, 640
        ns = torch.arange(S)[:, None] * torch.arange(S)[None, :]
        nd = torch.arange(D)[:, None] * torch.arange(D)[None, :]
        Ws_re = torch.cos(-2.0 * torch.pi * ns / S).to(float)
        Ws_im = torch.sin(-2.0 * torch.pi * ns / S).to(float)
        Wd_re = torch.cos(-2.0 * torch.pi * nd / D).to(float)
        Wd_im = torch.sin(-2.0 * torch.pi * nd / D).to(float)
        return {
            "x": _w((lambda *s: torch.randn(*s, dtype=torch.bfloat16) * 0.05)(B, S, D)),
            "dft_seq_re": _w(Ws_re),
            "dft_seq_im": _w(Ws_im),
            "dft_hid_re": _w(Wd_re),
            "dft_hid_im": _w(Wd_im),
        }
    _A_in = _A_setup()

    def _B_setup():
        B, S, D, F = 1, 2048, 640, 1536
        return {
            "x": _w((lambda *s: torch.randn(*s, dtype=torch.bfloat16) * 0.05)(B, S, D)),
            "w1": _w((lambda *s: torch.randn(*s, dtype=torch.bfloat16) * 0.2)(D, F) * (D ** -0.5)),
            "w2": _w((lambda *s: torch.randn(*s, dtype=torch.bfloat16) * 0.05)(F, D) * (F ** -0.5)),
        }
    _B_in = _B_setup()

    return {
        "A_x": _A_in["x"],
        "A_dft_seq_re": _A_in["dft_seq_re"],
        "A_dft_seq_im": _A_in["dft_seq_im"],
        "A_dft_hid_re": _A_in["dft_hid_re"],
        "A_dft_hid_im": _A_in["dft_hid_im"],
        "B_x": _B_in["x"],
        "B_w1": _B_in["w1"],
        "B_w2": _B_in["w2"],
    }

def reference(A_x, A_dft_seq_re, A_dft_seq_im, A_dft_hid_re, A_dft_hid_im, B_x, B_w1, B_w2):
    def _A_ref(x, dft_seq_re, dft_seq_im, dft_hid_re, dft_hid_im):
        a = torch.einsum("bsd,ed->bse", x, dft_hid_re)
        b = torch.einsum("bsd,ed->bse", x, dft_hid_im)
        y = torch.einsum("ts,bse->bte", dft_seq_re, a) - torch.einsum("ts,bse->bte", dft_seq_im, b)
        return y

    def _B_ref(x, w1, w2):
        h = torch.einsum("bsd,df->bsf", x, w1)
        h = _silu(h)
        out = torch.einsum("bsf,fd->bsd", h, w2)
        return out

    x = A_x
    xn = _layernorm(x, axis=-1)
    s = _A_ref(xn, A_dft_seq_re, A_dft_seq_im, A_dft_hid_re, A_dft_hid_im)
    g = _silu(_B_ref(xn, B_w1, B_w2))
    return x + s * g
```

```python
from gen import E, vr, srd, interleave, WS_H, WS_U, WS_W2T, WS_END

NS = 6
SLOT = 20480
U_LDS = NS * SLOT
L2_LDS = U_LDS + 20480
L2_BLOCK = 256
L2_VGPR = 512
L2_ACC = 256


def ar(b, n=4):
    return "a[%d:%d]" % (b, b + n - 1)


def gen_l2(opt):
    e = E()
    NCH = 12
    M = "v_mfma_f32_16x16x32_bf16 %s, %s, %s, %s"
    e("s_cmp_ge_u32 s2, 256")
    e("s_cbranch_scc1 L2_END")
    e("s_load_dwordx2 s[28:29], s[0:1], 0")
    e("s_load_dwordx2 s[30:31], s[0:1], 64")
    e("s_load_dwordx2 s[32:33], s[0:1], 80")
    e("v_lshrrev_b32 v2, 6, v0")
    e("v_and_b32 v1, 63, v0")
    e("v_readfirstlane_b32 s3, v2")
    e("s_and_b32 s40, s2, 7")
    e("s_lshr_b32 s41, s2, 3")
    e("s_lshr_b32 s4, s40, 1")
    e("s_lshl_b32 s4, s4, 3")
    e("s_and_b32 s42, s41, 7")
    e("s_add_u32 s4, s4, s42")
    e("s_and_b32 s5, s40, 1")
    e("s_lshl_b32 s5, s5, 2")
    e("s_lshr_b32 s42, s41, 3")
    e("s_add_u32 s5, s5, s42")
    e("s_lshr_b32 s6, s3, 1")
    e("s_and_b32 s7, s3, 1")
    e("v_and_b32 v2, 15, v1")
    e("v_lshrrev_b32 v3, 4, v1")
    e("v_lshlrev_b32 v4, 4, v1")
    e("s_mul_i32 s35, s5, 80")
    e("s_sub_u32 s40, 640, s35")
    e("s_sub_u32 s41, 32, s4")
    e("s_and_b32 s41, s41, 31")
    e("s_cmp_eq_u32 s4, 0")
    e("s_cselect_b32 s42, 64, 63")
    e("s_cmp_ge_u32 s5, 4")
    e("s_cselect_b32 s34, -1, 1")
    e("s_cselect_b32 s35, s40, s35")
    e("s_cselect_b32 s36, s41, s4")
    e("s_cselect_b32 s37, s42, 0")
    e("v_mul_lo_u32 v5, v2, s34")
    e("v_mul_u32_u24 v6, 5120, v3")
    e("s_lshl_b32 s40, s34, 4")
    e("s_mov_b32 s41, s35")
    for n in range(5):
        e("v_add_u32 v7, s41, v5")
        if n == 0:
            e("v_cmp_ne_u32 vcc, 320, v7")
            e("s_nop 1")
            e("v_cndmask_b32 v7, 0, v7, vcc")
        e("v_lshl_add_u32 v%d, v7, 4, v6" % (8 + n))
        if n < 4:
            e("s_add_u32 s41, s41, s40")
    e("s_lshl_b32 s38, s36, 4")
    e("s_lshl_b32 s40, s3, 2")
    e("s_add_u32 s38, s38, s40")
    e("s_mul_i32 s38, s38, 5120")
    e("s_add_u32 s38, s38, 0x%x" % WS_U)
    e("s_mul_i32 s40, s5, 5")
    e("s_add_u32 s41, s40, s3")
    e("s_mul_i32 s20, s41, 49152")
    e("s_add_u32 s20, s20, 0x%x" % WS_W2T)
    e("s_add_u32 s41, s40, 4")
    e("s_mul_i32 s21, s41, 49152")
    e("s_lshl_b32 s41, s3, 10")
    e("s_add_u32 s21, s21, s41")
    e("s_add_u32 s21, s21, 0x%x" % WS_W2T)
    e("s_lshl_b32 s40, s6, 5")
    e("s_add_u32 s40, s40, s4")
    e("s_lshl_b32 s40, s40, 1")
    e("s_add_u32 s40, s40, s7")
    e("s_mul_i32 s22, s40, 49152")
    e("s_lshl_b32 s23, s3, 12")
    e("s_lshl_b32 s24, s3, 10")
    e("s_add_u32 s24, s24, 16384")
    e("s_mov_b32 s25, 0")
    if opt.get("krot2"):
        e(opt["krot2"])
    e("s_mov_b32 s26, s25")
    e("s_waitcnt lgkmcnt(0)")
    srd(e, 8, 32, WS_END)
    srd(e, 12, 28, 2048 * 1280)
    srd(e, 16, 30, 2048 * 1280)

    HR = 0
    def hreg(c, q): return HR + (c % 7) * 16 + q * 4

    def dma_w(c):
        slot = c % NS
        r = []
        r.append("s_add_u32 s40, s20, s25\ns_add_u32 m0, s23, %d\ns_add_u32 s41, s21, s25" % (slot * SLOT))
        for q in range(4):
            r.append("buffer_load_dwordx4 v4, s[8:11], s40 offen offset:%d lds" % (q * 1024))
        r.append("s_add_u32 m0, s24, %d\ns_add_u32 s25, s25, 4096\nbuffer_load_dwordx4 v4, s[8:11], s41 offen lds" % (slot * SLOT))
        r.append("s_cmp_eq_u32 s25, 49152\ns_cselect_b32 s25, 0, s25")
        return r

    def ld_h(c):
        r = []
        r.append("s_add_u32 s42, s22, s26\ns_add_u32 s26, s26, 4096")
        for q in range(4):
            r.append("buffer_load_dwordx4 %s, v4, s[8:11], s42 offen offset:%d" % (ar(hreg(c, q)), q * 1024))
        r.append("s_cmp_eq_u32 s26, 49152\ns_cselect_b32 s26, 0, s26")
        return r

    e("s_lshl_b32 s40, s3, 10")
    e("s_add_u32 s40, s40, %d" % U_LDS)
    for n in range(5):
        e("s_add_u32 m0, s40, %d" % (n * 4096))
        e("s_nop 0")
        e("buffer_load_dwordx4 v%d, s[8:11], s38 offen lds" % (8 + n))
    for c in range(NS):
        for l in dma_w(c):
            e(l)
        for l in ld_h(c):
            e(l)

    AO = 16
    AY = 36
    FR = [56, 96]
    WQ = 136
    XP = 152
    VL = 14
    def fw(s, k, n): return FR[s] + (k * 5 + n) * 4

    e("s_lshl_b32 s40, s7, 5")
    e("s_add_u32 s40, s40, s6")
    e("v_lshlrev_b32 v5, 1, v2")
    e("v_add_u32 v5, s40, v5")
    e("v_mul_lo_u32 v5, v5, s34")
    e("v_add_u32 v5, s37, v5")
    e("v_and_b32 v5, 63, v5")
    e("v_cvt_f32_u32 v5, v5")
    e("v_mul_f32 v5, 0x3c800000, v5")
    e("v_lshlrev_b32 v6, 2, v3")
    e("v_cvt_f32_u32 v6, v6")
    import struct
    for kk in range(4):
        for q in range(4):
            lit = struct.unpack("<I", struct.pack("<f", float(16 * kk + q)))[0]
            e("v_add_f32 v7, 0x%x, v6" % lit)
            e("v_mul_f32 v7, v7, v5")
            e("v_cos_f32 v%d, v7" % (176 + q))
            e("v_sin_f32 v%d, v7" % (180 + q))
        e("s_nop 0")
        for q in range(4):
            e("v_cvt_pk_bf16_f32 v%d, v%d, -v%d" % (WQ + kk * 4 + q, 176 + q, 180 + q))
    for i in range(40):
        e("v_mov_b32 v%d, 0" % (AO + i))
    e("v_mov_b32 v%d, v4" % VL)
    e("v_add_u32 v%d, %d, v4" % (VL + 1, 3 * SLOT))
    e("v_add_u32 v13, %d, v4" % U_LDS)

    def w_reads(c, half, s):
        slot = c % NS
        r = []
        for k in range(2):
            for n in range(5):
                r.append("ds_read_b128 %s, v%d offset:%d" % (vr(fw(s, k, n)), VL + slot // 3, (slot % 3) * SLOT + n * 4096 + (2 * half + k) * 1024))
        return r

    def o_mfma(c, half, s):
        m = []
        for k in range(2):
            for n in range(5):
                m.append(M % (vr(AO + 4 * n), vr(fw(s, k, n)), ar(hreg(c, 2 * half + k)), vr(AO + 4 * n)))
        return m

    e("s_waitcnt vmcnt(%d)" % (9 * (NS - 1)))
    e("s_barrier")
    for kk in range(4):
        for n in range(5):
            e("ds_read_b128 %s, v13 offset:%d" % (vr(fw(kk // 2, kk % 2, n)), n * 4096 + kk * 1024))
    e("s_waitcnt lgkmcnt(10)")
    for kk in range(2):
        for n in range(5):
            e(M % (vr(AY + 4 * n), vr(fw(0, kk, n)), vr(WQ + 4 * kk), vr(AY + 4 * n)))
    e("s_waitcnt lgkmcnt(0)")
    ym = []
    for kk in range(2, 4):
        for n in range(5):
            ym.append(M % (vr(AY + 4 * n), vr(fw(1, kk - 2, n)), vr(WQ + 4 * kk), vr(AY + 4 * n)))
    for l in interleave(ym, w_reads(0, 0, 0), per=2):
        e(l)
    e("s_waitcnt lgkmcnt(0)")

    def x_setup():
        r = []
        s = []
        s.append("s_lshl_b32 s43, s7, 10\ns_lshl_b32 s44, s6, 5\ns_add_u32 s43, s43, s44\ns_add_u32 s43, s43, s4\ns_mul_i32 s43, s43, 1280\ns_mul_i32 s44, s5, 160\ns_add_u32 s43, s43, s44")
        r += s
        for rr in range(3):
            r.append("v_add_u32 v184, %d, v1\nv_mul_u32_u24 v185, 205, v184\nv_lshrrev_b32 v185, 11, v185\nv_mul_u32_u24 v186, 10, v185\nv_sub_u32 v186, v184, v186" % (64 * rr))
            r.append("v_mul_u32_u24 v187, 0x14000, v185\nv_lshl_add_u32 v%d, v186, 4, v187\nv_mul_u32_u24 v187, 336, v185\nv_lshl_add_u32 v%d, v186, 5, v187" % (176 + rr, 180 + rr))
        for rr in range(3):
            if rr == 2:
                r.append("s_mov_b32 exec_hi, 0\nbuffer_load_dwordx4 %s, v%d, s[12:15], s43 offen\ns_mov_b32 exec_hi, -1" % (vr(XP + 4 * rr), 176 + rr))
            else:
                r.append("buffer_load_dwordx4 %s, v%d, s[12:15], s43 offen" % (vr(XP + 4 * rr), 176 + rr))
        return r

    for c in range(NCH):
        oth = w_reads(c, 1, 1)
        if c >= 1 and c + NS - 1 < NCH:
            oth = oth + ld_h(c + NS - 1)
        for l in interleave(o_mfma(c, 0, 0), oth, per=2):
            e(l)
        e("s_waitcnt lgkmcnt(0)")
        if c < NCH - 1:
            last = min(c + NS - 1, NCH - 1)
            e("s_waitcnt vmcnt(%d)" % (9 * (last - (c + 1))))
            e("s_barrier")
            oth = w_reads(c + 1, 0, 0)
            if c + NS < NCH:
                oth = oth + dma_w(c + NS)
            if c == NCH - NS:
                oth = oth + x_setup()
            for l in interleave(o_mfma(c, 1, 1), oth, per=2):
                e(l)
            e("s_waitcnt lgkmcnt(0)")
        else:
            for l in o_mfma(c, 1, 1):
                e(l)
    e("s_cmp_eq_u32 s5, 0")
    e("s_cselect_b32 s44, 0xffff, 0")
    e("s_mov_b32 s45, 0")
    e("s_mov_b32 s40, 0xbfb8aa3b")
    e("v_mov_b32 v188, s40")
    e("v_mov_b32 v189, s40")
    e("v_mov_b32 v190, 1.0")
    e("v_mov_b32 v191, 1.0")
    e("v_cndmask_b32_e64 v%d, v%d, 0, s[44:45]" % (AY, AY))
    e("s_mul_i32 s46, s3, %d" % SLOT)
    e("v_mul_u32_u24 v5, 336, v2")
    e("v_lshl_add_u32 v5, v3, 4, v5")
    e("v_add_u32 v5, s46, v5")
    for rr in range(3):
        e("v_add_u32 v%d, s46, v%d" % (180 + rr, 180 + rr))
    Z = 56
    e("s_nop 1")
    for k in range(10):
        e("v_pk_mul_f32 %s, %s, v[188:189]" % (vr(Z + 2 * k, 2), vr(AO + 2 * k, 2)))
    for k in range(20):
        e("v_exp_f32 v%d, v%d" % (Z + k, Z + k))
    for k in range(10):
        e("v_pk_mul_f32 %s, %s, %s" % (vr(AY + 2 * k, 2), vr(AY + 2 * k, 2), vr(AO + 2 * k, 2)))
    for k in range(10):
        e("v_pk_add_f32 %s, %s, v[190:191]" % (vr(Z + 2 * k, 2), vr(Z + 2 * k, 2)))
    for k in range(20):
        e("v_rcp_f32 v%d, v%d" % (Z + k, Z + k))
    e("s_nop 0")
    for n in range(5):
        for hh in range(2):
            k = 2 * n + hh
            e("v_pk_mul_f32 %s, %s, %s" % (vr(AY + 2 * k, 2), vr(AY + 2 * k, 2), vr(Z + 2 * k, 2)))
        e("ds_write_b128 v5, %s offset:%d" % (vr(AY + 4 * n), n * 64))
    e("s_waitcnt lgkmcnt(0)")
    PB = 96
    for rr in range(3):
        e("ds_read_b128 %s, v%d" % (vr(PB + 8 * rr), 180 + rr))
        e("ds_read_b128 %s, v%d offset:16" % (vr(PB + 8 * rr + 4), 180 + rr))
    XU = 192
    e("s_waitcnt vmcnt(0)")
    for rr in range(3):
        for k in range(4):
            e("v_lshlrev_b32 v%d, 16, v%d" % (XU + 8 * rr + 2 * k, XP + 4 * rr + k))
            e("v_and_b32 v%d, 0xffff0000, v%d" % (XU + 8 * rr + 2 * k + 1, XP + 4 * rr + k))
    e("s_waitcnt lgkmcnt(0)")
    for rr in range(3):
        for k in range(4):
            e("v_pk_add_f32 %s, %s, %s" % (vr(XU + 8 * rr + 2 * k, 2), vr(XU + 8 * rr + 2 * k, 2), vr(PB + 8 * rr + 2 * k, 2)))
        for k in range(4):
            e("v_cvt_pk_bf16_f32 v%d, v%d, v%d" % (XP + 4 * rr + k, XU + 8 * rr + 2 * k, XU + 8 * rr + 2 * k + 1))
        if rr == 2:
            e("s_mov_b32 exec_hi, 0")
        e("buffer_store_dwordx4 %s, v%d, s[16:19], s43 offen" % (vr(XP + 4 * rr), 176 + rr))
    e("L2_END:")
    e("s_endpgm")
    return e.text()
```

```python
import sys
KN = "recurrent_scan__spectral_fnet__dense_activation_silu__prompt"

WS_H = 0
WS_U = 0x600000
WS_W2T = 0x880000
WS_END = 0xA60000


class E:
    def __init__(self):
        self.L = []

    def __call__(self, s):
        for x in s.split("\n"):
            x = x.strip()
            if x:
                self.L.append(x)

    def text(self):
        return "\n".join(("" if l.endswith(":") else "  ") + l for l in self.L) + "\n"


def vr(b, n=4):
    return "v[%d:%d]" % (b, b + n - 1)


def srd(e, d, lo, nbytes):
    e("s_mov_b32 s%d, s%d" % (d, lo))
    e("s_mov_b32 s%d, s%d" % (d + 1, lo + 1))
    e("s_mov_b32 s%d, 0x%x" % (d + 2, nbytes))
    e("s_mov_b32 s%d, 0x00020000" % (d + 3))


def interleave(mf, other, per=2, start=0):
    out = []
    o = list(other)
    for i, m in enumerate(mf):
        out.append(m)
        if i >= start:
            for _ in range(per):
                if o:
                    out.append(o.pop(0))
    out += o
    return out


X_LDS = 0
W1_LDS = 65536
H_LDS = 114688
W2S_LDS = 139264
ST_LDS = 147456
CS_LDS = 148480
L1_LDS = 148864


def gen_l1(opt):
    e = E()
    NCH = 10
    e("s_cmp_ge_u32 s2, 256")
    e("s_cbranch_scc1 L1_END")
    e("s_load_dwordx2 s[28:29], s[0:1], 0")
    e("s_load_dwordx2 s[30:31], s[0:1], 24")
    e("s_load_dwordx2 s[32:33], s[0:1], 32")
    e("s_load_dwordx2 s[34:35], s[0:1], 48")
    e("s_load_dwordx2 s[36:37], s[0:1], 56")
    e("s_load_dwordx2 s[38:39], s[0:1], 80")
    e("v_lshrrev_b32 v2, 6, v0")
    e("v_and_b32 v1, 63, v0")
    e("v_readfirstlane_b32 s3, v2")
    e("s_and_b32 s40, s2, 7")
    e("s_lshr_b32 s41, s2, 3")
    e("s_lshr_b32 s5, s40, 1")
    e("s_lshl_b32 s5, s5, 2")
    e("s_and_b32 s42, s41, 3")
    e("s_add_u32 s5, s5, s42")
    e("s_and_b32 s6, s40, 1")
    e("s_lshl_b32 s6, s6, 3")
    e("s_lshr_b32 s42, s41, 2")
    e("s_add_u32 s6, s6, s42")
    e("s_and_b32 s4, s3, 3")
    e("s_lshl_b32 s7, s5, 2")
    e("s_add_u32 s7, s7, s4")
    e("v_and_b32 v2, 15, v1")
    e("v_lshrrev_b32 v3, 4, v1")
    e("v_lshrrev_b32 v6, 1, v2")
    e("v_xor_b32 v6, v6, v3")
    e("v_lshlrev_b32 v6, 4, v6")
    e("v_lshl_add_u32 v4, v2, 7, v6")
    e("v_xor_b32 v5, 64, v4")
    e("s_cmp_ge_u32 s3, 4")
    e("s_cbranch_scc1 L1_B")

    ACC = 16
    CSA = 64
    FR = [72, 104]
    ONES = 136
    XA = 140
    WA = 142
    def acc(mu, p, u): return ACC + ((mu * 3 + p) * 2 + u) * 4
    def fx(s, mu): return FR[s] + mu * 4
    def fw(s, p, u): return FR[s] + 8 + (p * 2 + u) * 4
    e("s_cmp_eq_u32 s4, 3")
    e("s_cselect_b32 s8, 0, s4")
    e("s_lshl_b32 s40, s4, 12")
    e("v_add_u32 v%d, s40, v4" % XA)
    e("v_add_u32 v%d, s40, v5" % (XA + 1))
    e("v_lshrrev_b32 v6, 2, v2")
    e("v_lshl_add_u32 v6, v3, 3, v6")
    e("v_mul_u32_u24 v6, 192, v6")
    e("v_and_b32 v7, 1, v2")
    e("v_lshl_add_u32 v6, v7, 3, v6")
    e("v_lshrrev_b32 v7, 1, v2")
    e("v_and_b32 v7, 1, v7")
    e("v_and_b32 v8, 1, v3")
    e("v_lshlrev_b32 v8, 1, v8")
    e("v_xor_b32 v7, v7, v8")
    e("v_lshl_add_u32 v6, v7, 4, v6")
    e("v_xor_b32 v7, 32, v6")
    for p in range(3):
        e("s_add_u32 s40, s8, %d" % p)
        e("s_cmp_ge_u32 s40, 3")
        e("s_cselect_b32 s41, 3, 0")
        e("s_sub_u32 s40, s40, s41")
        e("s_mov_b32 s%d, s40" % (44 + p))
        e("s_lshl_b32 s40, s40, 6")
        e("s_add_u32 s40, s40, %d" % W1_LDS)
        e("v_add_u32 v%d, s40, v6" % (WA + 2 * p))
        e("v_add_u32 v%d, s40, v7" % (WA + 2 * p + 1))
    for i in range(48 + 8):
        e("v_mov_b32 v%d, 0" % (ACC + i))
    for i in range(4):
        e("v_mov_b32 v%d, 0x3f803f80" % (ONES + i))

    def a_reads(c, ks, s):
        slot = c % 4
        r = []
        for mu in range(2):
            r.append("ds_read_b128 %s, v%d offset:%d" % (vr(fx(s, mu)), XA + ks, slot * 16384 + mu * 2048))
        for p in range(3):
            for u in range(2):
                for h in range(2):
                    r.append("ds_read_b64_tr_b16 %s, v%d offset:%d" % (vr(fw(s, p, u) + 2 * h, 2), WA + 2 * p + u, slot * 12288 + ks * 6144 + h * 768))
        return r

    def a_mfma(s):
        m = []
        for p in range(3):
            for u in range(2):
                for mu in range(2):
                    m.append("v_mfma_f32_16x16x32_bf16 %s, %s, %s, %s" % (vr(acc(mu, p, u)), vr(fw(s, p, u)), vr(fx(s, mu)), vr(acc(mu, p, u))))
                if p == 0:
                    m.append("v_mfma_f32_16x16x32_bf16 %s, %s, %s, %s" % (vr(CSA + 4 * u), vr(fw(s, 0, u)), vr(ONES), vr(CSA + 4 * u)))
        return m

    e("s_barrier")
    for r in a_reads(0, 0, 0):
        e(r)
    e("s_waitcnt lgkmcnt(0)")
    for c in range(NCH):
        for l in interleave(a_mfma(0), a_reads(c, 1, 1), per=2):
            e(l)
        e("s_waitcnt lgkmcnt(0)")
        if c < NCH - 1:
            e("s_barrier")
            for l in interleave(a_mfma(1), a_reads(c + 1, 0, 0), per=2):
                e(l)
            e("s_waitcnt lgkmcnt(0)")
        else:
            for l in a_mfma(1):
                e(l)
    T = 148
    e("v_lshlrev_b32 v6, 4, v3")
    e("s_lshl_b32 s40, s8, 7")
    e("s_add_u32 s40, s40, %d" % CS_LDS)
    e("v_add_u32 v7, s40, v6")
    e("s_lshl_b32 s40, s4, 8")
    e("s_add_u32 s40, s40, %d" % ST_LDS)
    e("v_lshlrev_b32 v8, 2, v2")
    e("v_add_u32 v8, s40, v8")
    for p in range(3):
        e("s_lshl_b32 s40, s%d, 7" % (44 + p))
        e("s_add_u32 s40, s40, %d" % CS_LDS)
        e("v_add_u32 v%d, s40, v6" % (9 + p))
    e("v_lshlrev_b32 v12, 4, v1")
    e("s_mov_b32 exec_lo, 0x00010001")
    e("s_mov_b32 exec_hi, 0x00010001")
    e("s_nop 4")
    e("ds_write_b128 v7, %s" % vr(CSA))
    e("ds_write_b128 v7, %s offset:64" % vr(CSA + 4))
    e("s_mov_b64 exec, -1")
    srd(e, 24, 38, WS_END)
    e("s_waitcnt lgkmcnt(0)")
    e("s_barrier")
    for mu in range(2):
        e("ds_read_b32 v%d, v8 offset:%d" % (72 + 2 * mu, mu * 64))
        e("ds_read_b32 v%d, v8 offset:%d" % (76 + 2 * mu, 128 + mu * 64))
    CSR = 80
    for p in range(3):
        for u in range(2):
            e("ds_read_b128 %s, v%d offset:%d" % (vr(CSR + (p * 2 + u) * 4), 9 + p, u * 64))
    e("s_mov_b32 s40, 0x3acccccd")
    e("s_mov_b32 s41, 0x3727c5ac")
    e("s_mov_b32 s42, 0xbfb8aa3b")
    e("v_mov_b32 v104, 1.0")
    e("v_mov_b32 v105, 1.0")
    e("s_waitcnt lgkmcnt(6)")
    for mu in range(2):
        m, q = 72 + 2 * mu, 76 + 2 * mu
        e("v_mul_f32 v%d, s40, v%d" % (m, m))
        e("v_mul_f32 v%d, s40, v%d" % (q, q))
        e("v_fma_f32 v%d, -v%d, v%d, v%d" % (q, m, m, q))
        e("v_add_f32 v%d, s41, v%d" % (q, q))
        e("v_rsq_f32 v%d, v%d" % (q, q))
    e("s_nop 0")
    for mu in range(2):
        q = 76 + 2 * mu
        e("v_mul_f32 v%d, s42, v%d" % (106 + 2 * mu, q))
    e("s_waitcnt lgkmcnt(0)")
    e("s_mul_i32 s40, s7, 96")
    e("s_mul_i32 s41, s6, 3")
    e("s_add_u32 s40, s40, s41")
    TT = 112
    ZZ = 120
    OUT = 128
    n = 0
    for mu in range(2):
        m, r_, rn = 72 + 2 * mu, 76 + 2 * mu, 106 + 2 * mu
        for p in range(3):
            for u in range(2):
                for hh in range(2):
                    a = acc(mu, p, u) + 2 * hh
                    cs = CSR + (p * 2 + u) * 4 + 2 * hh
                    t = TT + u * 4 + hh * 2
                    e("v_pk_fma_f32 %s, %s, %s, %s op_sel_hi:[1,0,1] neg_lo:[0,1,0] neg_hi:[0,1,0]" % (vr(t, 2), vr(cs, 2), vr(m, 2), vr(a, 2)))
            for k in range(4):
                e("v_pk_mul_f32 %s, %s, %s op_sel_hi:[1,0]" % (vr(ZZ + 2 * k, 2), vr(TT + 2 * k, 2), vr(rn, 2)))
            for k in range(8):
                e("v_exp_f32 v%d, v%d" % (ZZ + k, ZZ + k))
            for k in range(4):
                e("v_pk_mul_f32 %s, %s, %s op_sel_hi:[1,0]" % (vr(TT + 2 * k, 2), vr(TT + 2 * k, 2), vr(r_, 2)))
            for k in range(4):
                e("v_pk_add_f32 %s, %s, v[104:105]" % (vr(ZZ + 2 * k, 2), vr(ZZ + 2 * k, 2)))
            for k in range(8):
                e("v_rcp_f32 v%d, v%d" % (ZZ + k, ZZ + k))
            e("s_add_u32 s41, s40, s%d" % (44 + p))
            e("s_add_u32 s41, s41, %d" % (mu * 48))
            e("s_lshl_b32 s41, s41, 10")
            for k in range(4):
                e("v_pk_mul_f32 %s, %s, %s" % (vr(TT + 2 * k, 2), vr(TT + 2 * k, 2), vr(ZZ + 2 * k, 2)))
            o = OUT + 4 * n
            for k in range(4):
                e("v_cvt_pk_bf16_f32 v%d, v%d, v%d" % (o + k, TT + 2 * k, TT + 2 * k + 1))
            e("buffer_store_dwordx4 %s, v12, s[24:27], s41 offen%s" % (vr(o), opt.get("hst", "")))
            n += 1
    e("s_endpgm")

    e("L1_B:")
    ZA = 16
    GA = 40
    FB = [48, 68]
    TW = 88
    VX = 112
    VW = 116
    VH = 119
    VH2 = 120
    XB = 121
    HB = 123
    VW2 = 125
    def za(mu, T): return ZA + (mu * 3 + T) * 4
    def bx(s, mu): return FB[s] + mu * 4
    def bh(s, T): return FB[s] + 8 + T * 4
    e("v_lshrrev_b32 v6, 3, v1")
    e("v_and_b32 v7, 7, v1")
    e("v_xor_b32 v8, v7, v3")
    e("v_lshlrev_b32 v8, 4, v8")
    e("s_mov_b32 s40, 81920")
    e("v_mul_lo_u32 v9, v6, s40")
    e("v_add_u32 v9, v9, v8")
    e("s_mul_i32 s41, s7, 1280")
    for q in range(4):
        e("s_add_u32 s42, s41, %d" % (q * 8 * 81920 - q * 1024))
        if q % 2 == 0:
            e("v_add_u32 v%d, s42, v9" % (VX + q))
        else:
            e("v_xor_b32 v10, 64, v9")
            e("v_add_u32 v%d, s42, v10" % (VX + q))
    e("s_mul_i32 s41, s4, %d" % (16 * 3072))
    e("s_mul_i32 s42, s6, 192")
    e("s_add_u32 s41, s41, s42")
    for i in range(3):
        e("v_add_u32 v10, %d, v1" % (64 * i))
        e("v_mul_u32_u24 v11, 171, v10")
        e("v_lshrrev_b32 v11, 11, v11")
        e("v_mul_u32_u24 v12, 12, v11")
        e("v_sub_u32 v12, v10, v12")
        e("v_lshrrev_b32 v13, 3, v11")
        e("v_lshlrev_b32 v13, 1, v13")
        e("v_xor_b32 v12, v12, v13")
        e("v_mul_u32_u24 v11, 3072, v11")
        e("v_lshl_add_u32 v11, v12, 4, v11")
        e("s_sub_u32 s42, s41, %d" % (i * 1024))
        e("v_add_u32 v%d, s42, v11" % (VW + i))
    e("s_and_b32 s41, s4, 1")
    e("s_mul_i32 s42, s6, 20")
    e("s_lshl_b32 s43, s41, 3")
    e("s_add_u32 s43, s43, s42")
    e("v_add_u32 v10, s43, v6")
    e("v_mov_b32 v11, 320")
    e("v_cmp_eq_u32 vcc, 0, v10")
    e("s_lshl_b32 s43, s41, 6")
    e("v_xor_b32 v12, s43, v8")
    e("v_cndmask_b32 v10, v10, v11, vcc")
    e("v_mul_u32_u24 v10, 1280, v10")
    e("v_add_u32 v%d, v10, v12" % VH)
    e("s_add_u32 s43, s42, 16")
    e("v_add_u32 v10, s43, v6")
    e("v_and_b32 v10, 0x1ff, v10")
    e("s_cmp_eq_u32 s4, 1")
    e("s_cselect_b32 s43, 0, 1280")
    e("v_mul_lo_u32 v10, v10, s43")
    e("s_lshl_b32 s43, s4, 1")
    e("v_add_u32 v11, s43, v3")
    e("v_and_b32 v11, 7, v11")
    e("v_xor_b32 v11, v11, v7")
    e("v_lshl_add_u32 v%d, v11, 4, v10" % VH2)
    e("s_cmp_ge_u32 s2, 240")
    e("s_cselect_b32 s43, 240, 0")
    e("s_sub_u32 s43, s2, s43")
    e("s_mul_i32 s47, s43, 1366")
    e("s_lshr_b32 s47, s47, 16")
    e("s_mul_i32 s48, s47, 48")
    e("s_sub_u32 s48, s43, s48")
    e("v_lshrrev_b32 v10, 2, v1")
    e("v_mul_u32_u24 v10, 1280, v10")
    e("v_and_b32 v11, 3, v1")
    e("v_lshl_add_u32 v10, v11, 4, v10")
    e("s_mul_i32 s43, s48, %d" % (32 * 1280))
    e("s_lshl_b32 s49, s47, 8")
    e("s_add_u32 s43, s43, s49")
    e("s_lshl_b32 s49, s4, 6")
    e("s_add_u32 s43, s43, s49")
    e("v_add_u32 v%d, s43, v10" % VW2)
    e("s_lshl_b32 s50, s4, 12")
    e("s_mul_i32 s51, s4, 3072")
    e("s_add_u32 s51, s51, %d" % W1_LDS)
    e("s_lshl_b32 s52, s4, 10")
    e("s_add_u32 s52, s52, %d" % H_LDS)
    e("s_lshl_b32 s53, s4, 9")
    e("s_add_u32 s53, s53, %d" % (H_LDS + 4096))
    e("s_mov_b32 s54, 0")
    e("s_mov_b32 s55, 0")
    if opt.get("krot"):
        e(opt["krot"])
    e("s_waitcnt lgkmcnt(0)")
    srd(e, 8, 28, 2048 * 1280)
    srd(e, 12, 34, 640 * 3072)
    e("s_cmp_ge_u32 s4, 2")
    e("s_cselect_b32 s16, s32, s30")
    e("s_cselect_b32 s17, s33, s31")
    e("s_mov_b32 s18, %d" % (640 * 1280))
    e("s_mov_b32 s19, 0x00020000")
    srd(e, 20, 36, 1536 * 1280)
    srd(e, 24, 38, WS_END)

    def dma(c):
        slot = c % 4
        r = []
        r.append("s_add_u32 m0, s50, %d\ns_nop 0" % (slot * 16384))
        for q in range(4):
            r.append("buffer_load_dwordx4 v%d, s[8:11], s54 offen offset:%d lds" % (VX + q, q * 1024))
        r.append("s_add_u32 m0, s51, %d\ns_nop 0" % (slot * 12288))
        for i in range(3):
            r.append("buffer_load_dwordx4 v%d, s[12:15], s55 offen offset:%d lds" % (VW + i, i * 1024))
        r.append("s_add_u32 m0, s52, %d\ns_nop 0\nbuffer_load_dwordx4 v%d, s[16:19], s54 offen lds" % (slot * 6144, VH))
        r.append("s_add_u32 m0, s53, %d\ns_mov_b32 exec_hi, 0\nbuffer_load_dwordx4 v%d, s[16:19], s54 offen lds\ns_mov_b32 exec_hi, -1" % (slot * 6144, VH2))
        r.append("s_add_u32 s54, s54, 128\ns_add_u32 s55, s55, 196608\ns_cmp_eq_u32 s54, 1280\ns_cselect_b32 s54, 0, s54\ns_cselect_b32 s55, 0, s55")
        return r

    for c in range(4):
        for l in dma(c):
            e(l)
    e("s_lshl_b32 s56, s4, 11")
    e("s_add_u32 s56, s56, %d" % W2S_LDS)
    e("s_mov_b32 m0, s56")
    e("s_mov_b32 s57, %d" % (16 * 1280 - 1024))
    e("buffer_load_dwordx4 v%d, s[20:23], 0 offen lds" % VW2)
    e("buffer_load_dwordx4 v%d, s[20:23], s57 offen offset:1024 lds" % VW2)
    e("v_add_u32 v%d, s50, v4" % XB)
    e("v_add_u32 v%d, s50, v5" % (XB + 1))
    e("v_add_u32 v%d, %d, v4" % (HB, H_LDS))
    e("v_add_u32 v%d, %d, v5" % (HB + 1, H_LDS))
    e("v_lshlrev_b32 v6, 8, v3")
    e("v_add_u32 v6, s7, v6")
    e("v_cvt_f32_u32 v6, v6")
    e("v_mul_f32 v6, 0x3a000000, v6")
    e("v_cvt_f32_u32 v7, v2")
    e("v_add_f32 v8, 0x41800000, v7")
    for tau in range(2):
        for j in range(8):
            cj = ((j & 3) + 16 * (j >> 2)) / 32.0
            import struct
            lit = struct.unpack("<I", struct.pack("<f", cj))[0]
            e("v_add_f32 v9, 0x%x, v6" % lit)
            e("v_mul_f32 v9, v9, v%d" % (7 + tau))
            e("v_cos_f32 v%d, v9" % (128 + j))
            e("v_sin_f32 v%d, v9" % (136 + j))
        e("s_nop 0")
        for k in range(4):
            e("v_cvt_pk_bf16_f32 v%d, v%d, v%d" % (TW + tau * 4 + k, 128 + 2 * k, 128 + 2 * k + 1))
            e("v_cvt_pk_bf16_f32 v%d, v%d, v%d" % (TW + 8 + tau * 4 + k, 136 + 2 * k, 136 + 2 * k + 1))
        for k in range(4):
            e("v_xor_b32 v%d, 0x80008000, v%d" % (TW + 16 + tau * 4 + k, TW + tau * 4 + k))
    for i in range(32):
        e("v_mov_b32 v%d, 0" % (ZA + i))

    def b_reads(c, ks, s):
        slot = c % 4
        r = []
        for mu in range(2):
            r.append("ds_read_b128 %s, v%d offset:%d" % (vr(bx(s, mu)), XB + ks, slot * 16384 + mu * 2048))
        for T in range(3):
            r.append("ds_read_b128 %s, v%d offset:%d" % (vr(bh(s, T)), HB + ks, slot * 6144 + T * 2048))
        return r

    def b_mfma(s):
        m = []
        for T in range(3):
            for mu in range(2):
                m.append("v_mfma_f32_16x16x32_bf16 %s, %s, %s, %s" % (vr(za(mu, T)), vr(bx(s, mu)), vr(bh(s, T)), vr(za(mu, T))))
        for mu in range(2):
            m.append("v_mfma_f32_16x16x32_bf16 %s, %s, %s, %s" % (vr(GA + 4 * mu), vr(bx(s, mu)), vr(bx(s, mu)), vr(GA + 4 * mu)))
        return m

    e("s_waitcnt vmcnt(29)")
    e("s_barrier")
    for r in b_reads(0, 0, 0):
        e(r)
    e("s_waitcnt lgkmcnt(0)")
    for c in range(NCH):
        for l in interleave(b_mfma(0), b_reads(c, 1, 1), per=2):
            e(l)
        e("s_waitcnt lgkmcnt(0)")
        if c < NCH - 1:
            last_issued = min(c + 3, NCH - 1)
            allowed = 9 * (last_issued - (c + 1))
            if c < 2:
                allowed += 2
            e("s_waitcnt vmcnt(%d)" % allowed)
            e("s_barrier")
            oth = b_reads(c + 1, 0, 0)
            if c + 4 < NCH:
                oth = oth + dma(c + 4)
            for l in interleave(b_mfma(1), oth, per=2):
                e(l)
            e("s_waitcnt lgkmcnt(0)")
        else:
            for l in b_mfma(1):
                e(l)
    e("s_lshl_b32 s40, s4, 8")
    e("s_add_u32 s40, s40, %d" % ST_LDS)
    e("v_lshlrev_b32 v6, 2, v2")
    e("v_add_u32 v6, s40, v6")
    e("v_lshlrev_b32 v7, 4, v3")
    e("v_add_u32 v7, s40, v7")
    e("s_mov_b32 s58, 0xaaaaaaaa")
    e("s_mov_b32 s59, 0xaaaaaaaa")
    e("s_mov_b32 s60, 0xcccccccc")
    e("s_mov_b32 s61, 0xcccccccc")
    e("s_nop 2")
    for mu in range(2):
        g = GA + 4 * mu
        e("v_cndmask_b32_e64 v8, v%d, v%d, s[58:59]" % (g, g + 1))
        e("v_cndmask_b32_e64 v9, v%d, v%d, s[58:59]" % (g + 2, g + 3))
        e("v_cndmask_b32_e64 v%d, v8, v9, s[60:61]" % (10 + mu))
    e("s_mov_b32 exec_lo, 0x00f0000f")
    e("s_mov_b32 exec_hi, 0xf0000f00")
    for mu in range(2):
        e("ds_write_b32 v6, v%d offset:%d" % (10 + mu, 128 + mu * 64))
    e("s_mov_b32 exec_lo, 0x00100010")
    e("s_mov_b32 exec_hi, 0x00100010")
    for mu in range(2):
        e("ds_write_b128 v7, %s offset:%d" % (vr(za(mu, 2)), mu * 64))
    e("s_mov_b64 exec, -1")
    e("s_waitcnt lgkmcnt(0)")
    e("s_barrier")
    SUM = 48
    SQ = 56
    for mu in range(2):
        e("ds_read_b128 %s, v7 offset:%d" % (vr(SUM + 4 * mu), mu * 64))
        e("ds_read_b128 %s, v7 offset:%d" % (vr(SQ + 4 * mu), 128 + mu * 64))
    W2F = 128
    e("v_lshrrev_b32 v8, 2, v2")
    e("v_lshl_add_u32 v8, v3, 2, v8")
    e("v_lshlrev_b32 v8, 6, v8")
    e("v_and_b32 v9, 3, v2")
    e("v_lshl_add_u32 v8, v9, 3, v8")
    e("v_add_u32 v8, s56, v8")
    for t in range(2):
        for hh in range(2):
            e("ds_read_b64_tr_b16 %s, v8 offset:%d" % (vr(W2F + 4 * t + 2 * hh, 2), hh * 1024 + t * 32))
    e("s_mov_b32 s40, 0x3acccccd")
    e("s_mov_b32 s41, 0x3727c5ac")
    e("s_waitcnt lgkmcnt(4)")
    for k in range(8):
        e("v_mul_f32 v%d, s40, v%d" % (SUM + k, SUM + k))
        e("v_mul_f32 v%d, s40, v%d" % (SQ + k, SQ + k))
        e("v_fma_f32 v%d, -v%d, v%d, v%d" % (SQ + k, SUM + k, SUM + k, SQ + k))
        e("v_add_f32 v%d, s41, v%d" % (SQ + k, SQ + k))
        e("v_rsq_f32 v%d, v%d" % (SQ + k, SQ + k))
    e("s_nop 0")
    ZF = 64
    for T in range(3):
        for mu in range(2):
            for hh in range(2):
                a = za(mu, T) + 2 * hh
                e("v_pk_mul_f32 %s, %s, %s" % (vr(a, 2), vr(a, 2), vr(SQ + 4 * mu + 2 * hh, 2)))
        for mu in range(2):
            for hh in range(2):
                a = za(mu, T) + 2 * hh
                e("v_cvt_pk_bf16_f32 v%d, v%d, v%d" % (ZF + 4 * T + 2 * mu + hh, a, a + 1))
    e("s_waitcnt lgkmcnt(0)")
    e("v_lshlrev_b32 v9, 4, v1")
    e("s_lshl_b32 s40, s47, 3")
    e("s_lshl_b32 s41, s4, 1")
    e("s_add_u32 s40, s40, s41")
    e("s_mul_i32 s40, s40, 48")
    e("s_add_u32 s40, s40, s48")
    e("s_lshl_b32 s40, s40, 10")
    e("s_add_u32 s40, s40, 0x%x" % WS_W2T)
    e("s_add_u32 s41, s40, %d" % (48 * 1024))
    UR = 16
    def ur(t): return 16 + 4 * t
    def vv(t): return 24 + 4 * t
    def pp(t): return 32 + 4 * t
    def qq(t): return 40 + 4 * t
    def C(t): return TW + 4 * t
    def S(t): return TW + 8 + 4 * t
    def NC(t): return TW + 16 + 4 * t
    M = "v_mfma_f32_16x16x32_bf16 %s, %s, %s, %s"
    for t in range(2):
        e(M % (vr(ur(t)), vr(C(t)), vr(ZF), "0"))
        e(M % (vr(vv(t)), vr(S(t)), vr(ZF), "0"))
        e(M % (vr(pp(t)), vr(C(t)), vr(ZF + 8), "0"))
        e(M % (vr(qq(t)), vr(S(t)), vr(ZF + 8), "0"))
    for t in range(2):
        e(M % (vr(ur(t)), vr(S(t)), vr(ZF + 4), vr(ur(t))))
        e(M % (vr(vv(t)), vr(NC(t)), vr(ZF + 4), vr(vv(t))))
    e("buffer_store_dwordx4 %s, v9, s[24:27], s40 offen%s" % (vr(W2F), opt.get("wst", "")))
    e("buffer_store_dwordx4 %s, v9, s[24:27], s41 offen%s" % (vr(W2F + 4), opt.get("wst", "")))
    e("s_mov_b32 s40, %d" % (4 * 81920))
    e("v_mul_lo_u32 v10, v3, s40")
    e("v_lshl_add_u32 v10, v2, 4, v10")
    e("s_mul_i32 s40, s5, 320")
    e("s_mul_i32 s41, s6, 20")
    e("s_add_u32 s40, s40, s41")
    e("s_lshl_b32 s40, s40, 4")
    e("s_lshl_b32 s41, s4, 2")
    e("s_add_u32 s40, s40, s41")
    e("s_add_u32 s40, s40, 0x%x" % WS_U)
    e("s_nop 4")
    OU = 140
    for t in range(2):
        for i in range(4):
            e("v_add_f32_dpp v%d, v%d, v%d row_shl:8 row_mask:0xf bank_mask:0xf bound_ctrl:0" % (48 + 8 * t + i, qq(t) + i, pp(t) + i))
            e("v_subrev_f32_dpp v%d, v%d, v%d row_shl:8 row_mask:0xf bank_mask:0xf bound_ctrl:0" % (52 + 8 * t + i, pp(t) + i, qq(t) + i))
    for t in range(2):
        for i in range(4):
            e("v_cvt_pk_bf16_f32 v%d, v%d, v%d" % (OU + 4 * t + i, ur(t) + i, vv(t) + i))
    for t in range(2):
        for i in range(4):
            e("v_cvt_pk_bf16_f32 v%d, v%d, v%d" % (OU + 8 + 4 * t + i, 48 + 8 * t + i, 52 + 8 * t + i))
    for t in range(2):
        for i in range(4):
            e("s_add_u32 s41, s40, %d" % ((16 * t + i) * 81920))
            e("buffer_store_dword v%d, v10, s[24:27], s41 offen%s" % (OU + 4 * t + i, opt.get("ust", "")))
    e("s_mov_b32 exec_lo, 0x000f000f")
    e("s_mov_b32 exec_hi, 0x000f000f")
    for t in range(2):
        for i in range(4):
            e("s_add_u32 s41, s40, %d" % ((16 * t + i) * 81920))
            e("buffer_store_dword v%d, v10, s[24:27], s41 offen offset:256%s" % (OU + 8 + 4 * t + i, opt.get("ust", "")))
    e("L1_END:")
    e("s_endpgm")
    return e.text()


HEAD = """; Kernarg layout for this problem (88 bytes, ptrs only, base s[0:1]):
"""


def kernel_wrap(name, body, vgpr=256, sgpr=102, accum=None):
    accum = accum or vgpr
    txt = ".globl %s\n.p2align 8\n.type %s,@function\n%s:\n%s" % (name, name, name, body)
    desc = """.p2align 6
.amdhsa_kernel %s
  .amdhsa_next_free_vgpr %d
  .amdhsa_next_free_sgpr %d
  .amdhsa_accum_offset %d
  .amdhsa_group_segment_fixed_size 0
  .amdhsa_kernarg_size 88
  .amdhsa_user_sgpr_count 2
  .amdhsa_user_sgpr_kernarg_segment_ptr 1
  .amdhsa_system_sgpr_workgroup_id_x 1
.end_amdhsa_kernel
""" % (name, vgpr, sgpr, accum)
    return txt, desc


def build(opt=None, only_l1=False):
    opt = opt or {}
    k1 = KN + "_kernel"
    k2 = "fnet_l2_kernel"
    launches = ["; @launch kernel=%s grid=(256,1,1) block=(512,1,1) lds=%d" % (k1, L1_LDS)]
    t1, d1 = kernel_wrap(k1, gen_l1(opt))
    txt = [t1]
    desc = [d1]
    if not only_l1:
        from gen2 import gen_l2, L2_LDS, L2_BLOCK, L2_VGPR, L2_ACC
        launches.append("; @launch kernel=%s grid=(256,1,1) block=(%d,1,1) lds=%d" % (k2, L2_BLOCK, L2_LDS))
        t2, d2 = kernel_wrap(k2, gen_l2(opt), vgpr=L2_VGPR, accum=L2_ACC)
        txt.append(t2)
        desc.append(d2)
    s = HEAD + "\n".join(launches) + "\n.amdgcn_target \"amdgcn-amd-amdhsa--gfx950\"\n.text\n" + "\n".join(txt)
    s += ".section .rodata,\"a\"\n" + "".join(desc)
    return s


if __name__ == "__main__":
    only = len(sys.argv) > 1 and sys.argv[1] == "l1"
    s = build({}, only_l1=only)
    out = "cdna_kernels/%s.s" % KN if not only else "l1.s"
    open(out, "w").write(s)
    print("wrote", out, len(s))
```

```python
import sys
KN = "recurrent_scan__spectral_fnet__dense_activation_silu__prompt"

WS_H = 0
WS_U = 0x600000
WS_W2T = 0x880000
WS_END = 0xA60000


PROF_ON = False


class E:
    def __init__(self):
        self.L = []

    def __call__(self, s):
        for x in s.split("\n"):
            x = x.strip()
            if x:
                self.L.append(x)

    def text(self):
        return "\n".join(("" if l.endswith(":") else "  ") + l for l in self.L) + "\n"


def vr(b, n=4):
    return "v[%d:%d]" % (b, b + n - 1)


def srd(e, d, lo, nbytes):
    if nbytes == WS_END and PROF_ON:
        nbytes = 0x1000000
    e("s_mov_b32 s%d, s%d" % (d, lo))
    e("s_mov_b32 s%d, s%d" % (d + 1, lo + 1))
    e("s_mov_b32 s%d, 0x%x" % (d + 2, nbytes))
    e("s_mov_b32 s%d, 0x00020000" % (d + 3))


PROF_BASE = 0xB00000


def stamp(e, opt, i, real=False):
    if opt.get("prof"):
        e("%s s[%d:%d]" % ("s_memrealtime" if real else "s_memtime", 70 + 2 * i, 71 + 2 * i))


def prof_out(e, opt, kern, nwaves, wave_sreg, srd0, n=16):
    if not opt.get("prof"):
        return
    e("s_mov_b64 exec, -1")
    e("s_waitcnt vmcnt(0)")
    stamp(e, opt, n - 2)
    stamp(e, opt, n - 1, real=True)
    e("s_waitcnt lgkmcnt(0)")
    e("s_mul_i32 s68, s2, %d" % nwaves)
    e("s_add_u32 s68, s68, s%d" % wave_sreg)
    e("s_lshl_b32 s68, s68, 6")
    e("s_add_u32 s68, s68, 0x%x" % (PROF_BASE + kern * 0x40000))
    e("v_mov_b32 v250, 0")
    for i in range(n):
        e("v_mov_b32 v%d, s%d" % (240 + (i % 4), 70 + 2 * i))
        if i % 4 == 3:
            e("s_mov_b64 exec, 1")
            e("buffer_store_dwordx4 v[240:243], v250, s[%d:%d], s68 offen offset:%d" % (srd0, srd0 + 3, (i // 4) * 16))
            e("s_waitcnt vmcnt(0)")
            e("s_mov_b64 exec, -1")


def interleave(mf, other, per=2, start=0):
    out = []
    o = list(other)
    for i, m in enumerate(mf):
        out.append(m)
        if i >= start:
            for _ in range(per):
                if o:
                    out.append(o.pop(0))
    out += o
    return out


X_LDS = 0
W1_LDS = 65536
H_LDS = 114688
W2S_LDS = 139264
ST_LDS = 147456
CS_LDS = 148480
L1_LDS = 148864


def gen_l1(opt):
    e = E()
    NCH = 10
    e("s_cmp_ge_u32 s2, 256")
    e("s_cbranch_scc1 L1_END")
    stamp(e, opt, 0, real=True)
    stamp(e, opt, 1)
    e("s_load_dwordx2 s[28:29], s[0:1], 0")
    e("s_load_dwordx2 s[30:31], s[0:1], 24")
    e("s_load_dwordx2 s[32:33], s[0:1], 32")
    e("s_load_dwordx2 s[34:35], s[0:1], 48")
    e("s_load_dwordx2 s[36:37], s[0:1], 56")
    e("s_load_dwordx2 s[38:39], s[0:1], 80")
    e("v_lshrrev_b32 v2, 6, v0")
    e("v_and_b32 v1, 63, v0")
    e("v_readfirstlane_b32 s3, v2")
    e("s_and_b32 s40, s2, 7")
    e("s_lshr_b32 s41, s2, 3")
    e("s_lshr_b32 s5, s40, 1")
    e("s_lshl_b32 s5, s5, 2")
    e("s_and_b32 s42, s41, 3")
    e("s_add_u32 s5, s5, s42")
    e("s_and_b32 s6, s40, 1")
    e("s_lshl_b32 s6, s6, 3")
    e("s_lshr_b32 s42, s41, 2")
    e("s_add_u32 s6, s6, s42")
    e("s_and_b32 s4, s3, 3")
    e("s_lshl_b32 s7, s5, 2")
    e("s_add_u32 s7, s7, s4")
    e("v_and_b32 v2, 15, v1")
    e("v_lshrrev_b32 v3, 4, v1")
    e("v_lshrrev_b32 v6, 1, v2")
    e("v_xor_b32 v6, v6, v3")
    e("v_lshlrev_b32 v6, 4, v6")
    e("v_lshl_add_u32 v4, v2, 7, v6")
    e("v_xor_b32 v5, 64, v4")
    e("s_cmp_ge_u32 s3, 4")
    e("s_cbranch_scc1 L1_B")

    ACC = 16
    CSA = 64
    FR = [72, 104]
    ONES = 136
    XA = 140
    WA = 142
    def acc(mu, p, u): return ACC + ((mu * 3 + p) * 2 + u) * 4
    def fx(s, mu): return FR[s] + mu * 4
    def fw(s, p, u): return FR[s] + 8 + (p * 2 + u) * 4
    e("s_cmp_eq_u32 s4, 3")
    e("s_cselect_b32 s8, 0, s4")
    e("s_lshl_b32 s40, s4, 12")
    e("v_add_u32 v%d, s40, v4" % XA)
    e("v_add_u32 v%d, s40, v5" % (XA + 1))
    e("v_lshrrev_b32 v6, 2, v2")
    e("v_lshl_add_u32 v6, v3, 3, v6")
    e("v_mul_u32_u24 v6, 192, v6")
    e("v_and_b32 v7, 1, v2")
    e("v_lshl_add_u32 v6, v7, 3, v6")
    e("v_lshrrev_b32 v7, 1, v2")
    e("v_and_b32 v7, 1, v7")
    e("v_and_b32 v8, 1, v3")
    e("v_lshlrev_b32 v8, 1, v8")
    e("v_xor_b32 v7, v7, v8")
    e("v_lshl_add_u32 v6, v7, 4, v6")
    e("v_xor_b32 v7, 32, v6")
    for p in range(3):
        e("s_add_u32 s40, s8, %d" % p)
        e("s_cmp_ge_u32 s40, 3")
        e("s_cselect_b32 s41, 3, 0")
        e("s_sub_u32 s40, s40, s41")
        e("s_mov_b32 s%d, s40" % (44 + p))
        e("s_lshl_b32 s40, s40, 6")
        e("s_add_u32 s40, s40, %d" % W1_LDS)
        e("v_add_u32 v%d, s40, v6" % (WA + 2 * p))
        e("v_add_u32 v%d, s40, v7" % (WA + 2 * p + 1))
    for i in range(48 + 8):
        e("v_mov_b32 v%d, 0" % (ACC + i))
    for i in range(4):
        e("v_mov_b32 v%d, 0x3f803f80" % (ONES + i))

    def a_reads(c, ks, s):
        slot = c % 4
        r = []
        for mu in range(2):
            r.append("ds_read_b128 %s, v%d offset:%d" % (vr(fx(s, mu)), XA + ks, slot * 16384 + mu * 2048))
        for p in range(3):
            for u in range(2):
                for h in range(2):
                    r.append("ds_read_b64_tr_b16 %s, v%d offset:%d" % (vr(fw(s, p, u) + 2 * h, 2), WA + 2 * p + u, slot * 12288 + ks * 6144 + h * 768))
        return r

    def a_mfma(s):
        m = []
        for p in range(3):
            for u in range(2):
                for mu in range(2):
                    m.append("v_mfma_f32_16x16x32_bf16 %s, %s, %s, %s" % (vr(acc(mu, p, u)), vr(fw(s, p, u)), vr(fx(s, mu)), vr(acc(mu, p, u))))
                if p == 0:
                    m.append("v_mfma_f32_16x16x32_bf16 %s, %s, %s, %s" % (vr(CSA + 4 * u), vr(fw(s, 0, u)), vr(ONES), vr(CSA + 4 * u)))
        return m

    stamp(e, opt, 5)
    e("s_barrier")
    stamp(e, opt, 6)
    for r in a_reads(0, 0, 0):
        e(r)
    e("s_waitcnt lgkmcnt(0)")
    for c in range(NCH):
        for l in interleave(a_mfma(0), a_reads(c, 1, 1), per=2):
            e(l)
        e("s_waitcnt lgkmcnt(0)")
        if c < NCH - 1:
            e("s_barrier")
            for l in interleave(a_mfma(1), a_reads(c + 1, 0, 0), per=2):
                e(l)
            e("s_waitcnt lgkmcnt(0)")
            if c == 3: stamp(e, opt, 7)
            if c == 6: stamp(e, opt, 8)
        else:
            for l in a_mfma(1):
                e(l)
    stamp(e, opt, 9)
    T = 148
    e("v_lshlrev_b32 v6, 4, v3")
    e("s_lshl_b32 s40, s8, 7")
    e("s_add_u32 s40, s40, %d" % CS_LDS)
    e("v_add_u32 v7, s40, v6")
    e("s_lshl_b32 s40, s4, 8")
    e("s_add_u32 s40, s40, %d" % ST_LDS)
    e("v_lshlrev_b32 v8, 2, v2")
    e("v_add_u32 v8, s40, v8")
    for p in range(3):
        e("s_lshl_b32 s40, s%d, 7" % (44 + p))
        e("s_add_u32 s40, s40, %d" % CS_LDS)
        e("v_add_u32 v%d, s40, v6" % (9 + p))
    e("v_lshlrev_b32 v12, 4, v1")
    e("s_mov_b32 exec_lo, 0x00010001")
    e("s_mov_b32 exec_hi, 0x00010001")
    e("s_nop 4")
    e("ds_write_b128 v7, %s" % vr(CSA))
    e("ds_write_b128 v7, %s offset:64" % vr(CSA + 4))
    e("s_mov_b64 exec, -1")
    srd(e, 24, 38, WS_END)
    e("s_waitcnt lgkmcnt(0)")
    e("s_barrier")
    stamp(e, opt, 10)
    for mu in range(2):
        e("ds_read_b32 v%d, v8 offset:%d" % (72 + 2 * mu, mu * 64))
        e("ds_read_b32 v%d, v8 offset:%d" % (76 + 2 * mu, 128 + mu * 64))
    CSR = 80
    for p in range(3):
        for u in range(2):
            e("ds_read_b128 %s, v%d offset:%d" % (vr(CSR + (p * 2 + u) * 4), 9 + p, u * 64))
    e("s_mov_b32 s40, 0x3acccccd")
    e("s_mov_b32 s41, 0x3727c5ac")
    e("s_mov_b32 s42, 0xbfb8aa3b")
    e("v_mov_b32 v104, 1.0")
    e("v_mov_b32 v105, 1.0")
    e("s_waitcnt lgkmcnt(6)")
    for mu in range(2):
        m, q = 72 + 2 * mu, 76 + 2 * mu
        e("v_mul_f32 v%d, s40, v%d" % (m, m))
        e("v_mul_f32 v%d, s40, v%d" % (q, q))
        e("v_fma_f32 v%d, -v%d, v%d, v%d" % (q, m, m, q))
        e("v_add_f32 v%d, s41, v%d" % (q, q))
        e("v_rsq_f32 v%d, v%d" % (q, q))
    e("s_nop 0")
    for mu in range(2):
        q = 76 + 2 * mu
        e("v_mul_f32 v%d, s42, v%d" % (106 + 2 * mu, q))
    e("s_waitcnt lgkmcnt(0)")
    e("s_mul_i32 s40, s7, 96")
    e("s_mul_i32 s41, s6, 3")
    e("s_add_u32 s40, s40, s41")
    TT = 112
    ZZ = 120
    OUT = 128
    n = 0
    for mu in range(2):
        m, r_, rn = 72 + 2 * mu, 76 + 2 * mu, 106 + 2 * mu
        for p in range(3):
            for u in range(2):
                for hh in range(2):
                    a = acc(mu, p, u) + 2 * hh
                    cs = CSR + (p * 2 + u) * 4 + 2 * hh
                    t = TT + u * 4 + hh * 2
                    e("v_pk_fma_f32 %s, %s, %s, %s op_sel_hi:[1,0,1] neg_lo:[0,1,0] neg_hi:[0,1,0]" % (vr(t, 2), vr(cs, 2), vr(m, 2), vr(a, 2)))
            for k in range(4):
                e("v_pk_mul_f32 %s, %s, %s op_sel_hi:[1,0]" % (vr(ZZ + 2 * k, 2), vr(TT + 2 * k, 2), vr(rn, 2)))
            for k in range(8):
                e("v_exp_f32 v%d, v%d" % (ZZ + k, ZZ + k))
            for k in range(4):
                e("v_pk_mul_f32 %s, %s, %s op_sel_hi:[1,0]" % (vr(TT + 2 * k, 2), vr(TT + 2 * k, 2), vr(r_, 2)))
            for k in range(4):
                e("v_pk_add_f32 %s, %s, v[104:105]" % (vr(ZZ + 2 * k, 2), vr(ZZ + 2 * k, 2)))
            for k in range(8):
                e("v_rcp_f32 v%d, v%d" % (ZZ + k, ZZ + k))
            e("s_add_u32 s41, s40, s%d" % (44 + p))
            e("s_add_u32 s41, s41, %d" % (mu * 48))
            e("s_lshl_b32 s41, s41, 10")
            for k in range(4):
                e("v_pk_mul_f32 %s, %s, %s" % (vr(TT + 2 * k, 2), vr(TT + 2 * k, 2), vr(ZZ + 2 * k, 2)))
            o = OUT + 4 * n
            for k in range(4):
                e("v_cvt_pk_bf16_f32 v%d, v%d, v%d" % (o + k, TT + 2 * k, TT + 2 * k + 1))
            e("buffer_store_dwordx4 %s, v12, s[24:27], s41 offen%s" % (vr(o), opt.get("hst", "")))
            n += 1
    stamp(e, opt, 11)
    prof_out(e, opt, 0, 8, 3, 24)
    e("s_endpgm")

    e("L1_B:")
    ZA = 16
    GA = 40
    FB = [48, 68]
    TW = 88
    VX = 112
    VW = 116
    VH = 119
    VH2 = 120
    XB = 121
    HB = 123
    VW2 = 125
    def za(mu, T): return ZA + (mu * 3 + T) * 4
    def bx(s, mu): return FB[s] + mu * 4
    def bh(s, T): return FB[s] + 8 + T * 4
    e("v_lshrrev_b32 v6, 3, v1")
    e("v_and_b32 v7, 7, v1")
    e("v_xor_b32 v8, v7, v3")
    e("v_lshlrev_b32 v8, 4, v8")
    e("s_mov_b32 s40, 81920")
    e("v_mul_lo_u32 v9, v6, s40")
    e("v_add_u32 v9, v9, v8")
    e("s_mul_i32 s41, s7, 1280")
    for q in range(4):
        e("s_add_u32 s42, s41, %d" % (q * 8 * 81920 - q * 1024))
        if q % 2 == 0:
            e("v_add_u32 v%d, s42, v9" % (VX + q))
        else:
            e("v_xor_b32 v10, 64, v9")
            e("v_add_u32 v%d, s42, v10" % (VX + q))
    e("s_mul_i32 s41, s4, %d" % (16 * 3072))
    e("s_mul_i32 s42, s6, 192")
    e("s_add_u32 s41, s41, s42")
    for i in range(3):
        e("v_add_u32 v10, %d, v1" % (64 * i))
        e("v_mul_u32_u24 v11, 171, v10")
        e("v_lshrrev_b32 v11, 11, v11")
        e("v_mul_u32_u24 v12, 12, v11")
        e("v_sub_u32 v12, v10, v12")
        e("v_lshrrev_b32 v13, 3, v11")
        e("v_lshlrev_b32 v13, 1, v13")
        e("v_xor_b32 v12, v12, v13")
        e("v_mul_u32_u24 v11, 3072, v11")
        e("v_lshl_add_u32 v11, v12, 4, v11")
        e("s_sub_u32 s42, s41, %d" % (i * 1024))
        e("v_add_u32 v%d, s42, v11" % (VW + i))
    e("s_and_b32 s41, s4, 1")
    e("s_mul_i32 s42, s6, 20")
    e("s_lshl_b32 s43, s41, 3")
    e("s_add_u32 s43, s43, s42")
    e("v_add_u32 v10, s43, v6")
    e("v_mov_b32 v11, 320")
    e("v_cmp_eq_u32 vcc, 0, v10")
    e("s_lshl_b32 s43, s41, 6")
    e("v_xor_b32 v12, s43, v8")
    e("v_cndmask_b32 v10, v10, v11, vcc")
    e("v_mul_u32_u24 v10, 1280, v10")
    e("v_add_u32 v%d, v10, v12" % VH)
    e("s_add_u32 s43, s42, 16")
    e("v_add_u32 v10, s43, v6")
    e("v_and_b32 v10, 0x1ff, v10")
    e("s_cmp_eq_u32 s4, 1")
    e("s_cselect_b32 s43, 0, 1280")
    e("v_mul_lo_u32 v10, v10, s43")
    e("s_lshl_b32 s43, s4, 1")
    e("v_add_u32 v11, s43, v3")
    e("v_and_b32 v11, 7, v11")
    e("v_xor_b32 v11, v11, v7")
    e("v_lshl_add_u32 v%d, v11, 4, v10" % VH2)
    e("s_cmp_ge_u32 s2, 240")
    e("s_cselect_b32 s43, 240, 0")
    e("s_sub_u32 s43, s2, s43")
    e("s_mul_i32 s47, s43, 1366")
    e("s_lshr_b32 s47, s47, 16")
    e("s_mul_i32 s48, s47, 48")
    e("s_sub_u32 s48, s43, s48")
    e("v_lshrrev_b32 v10, 2, v1")
    e("v_mul_u32_u24 v10, 1280, v10")
    e("v_and_b32 v11, 3, v1")
    e("v_lshl_add_u32 v10, v11, 4, v10")
    e("s_mul_i32 s43, s48, %d" % (32 * 1280))
    e("s_lshl_b32 s49, s47, 8")
    e("s_add_u32 s43, s43, s49")
    e("s_lshl_b32 s49, s4, 6")
    e("s_add_u32 s43, s43, s49")
    e("v_add_u32 v%d, s43, v10" % VW2)
    e("s_lshl_b32 s50, s4, 12")
    e("s_mul_i32 s51, s4, 3072")
    e("s_add_u32 s51, s51, %d" % W1_LDS)
    e("s_lshl_b32 s52, s4, 10")
    e("s_add_u32 s52, s52, %d" % H_LDS)
    e("s_lshl_b32 s53, s4, 9")
    e("s_add_u32 s53, s53, %d" % (H_LDS + 4096))
    e("s_mov_b32 s54, 0")
    e("s_mov_b32 s55, 0")
    if opt.get("krot"):
        e(opt["krot"])
    e("s_waitcnt lgkmcnt(0)")
    stamp(e, opt, 2)
    srd(e, 8, 28, 2048 * 1280)
    srd(e, 12, 34, 640 * 3072)
    e("s_cmp_ge_u32 s4, 2")
    e("s_cselect_b32 s16, s32, s30")
    e("s_cselect_b32 s17, s33, s31")
    e("s_mov_b32 s18, %d" % (640 * 1280))
    e("s_mov_b32 s19, 0x00020000")
    srd(e, 20, 36, 1536 * 1280)
    srd(e, 24, 38, WS_END)

    def dma(c):
        slot = c % 4
        r = []
        r.append("s_add_u32 m0, s50, %d\ns_nop 0" % (slot * 16384))
        for q in range(4):
            r.append("buffer_load_dwordx4 v%d, s[8:11], s54 offen offset:%d lds" % (VX + q, q * 1024))
        r.append("s_add_u32 m0, s51, %d\ns_nop 0" % (slot * 12288))
        for i in range(3):
            r.append("buffer_load_dwordx4 v%d, s[12:15], s55 offen offset:%d lds" % (VW + i, i * 1024))
        r.append("s_add_u32 m0, s52, %d\ns_nop 0\nbuffer_load_dwordx4 v%d, s[16:19], s54 offen lds" % (slot * 6144, VH))
        r.append("s_add_u32 m0, s53, %d\ns_mov_b32 exec_hi, 0\nbuffer_load_dwordx4 v%d, s[16:19], s54 offen lds\ns_mov_b32 exec_hi, -1" % (slot * 6144, VH2))
        r.append("s_add_u32 s54, s54, 128\ns_add_u32 s55, s55, 196608\ns_cmp_eq_u32 s54, 1280\ns_cselect_b32 s54, 0, s54\ns_cselect_b32 s55, 0, s55")
        return r

    for c in range(4):
        for l in dma(c):
            e(l)
        if c == 0: stamp(e, opt, 3)
    stamp(e, opt, 4)
    e("s_lshl_b32 s56, s4, 11")
    e("s_add_u32 s56, s56, %d" % W2S_LDS)
    e("s_mov_b32 m0, s56")
    e("s_mov_b32 s57, %d" % (16 * 1280 - 1024))
    e("buffer_load_dwordx4 v%d, s[20:23], 0 offen lds" % VW2)
    e("buffer_load_dwordx4 v%d, s[20:23], s57 offen offset:1024 lds" % VW2)
    e("v_add_u32 v%d, s50, v4" % XB)
    e("v_add_u32 v%d, s50, v5" % (XB + 1))
    e("v_add_u32 v%d, %d, v4" % (HB, H_LDS))
    e("v_add_u32 v%d, %d, v5" % (HB + 1, H_LDS))
    e("v_lshlrev_b32 v6, 8, v3")
    e("v_add_u32 v6, s7, v6")
    e("v_cvt_f32_u32 v6, v6")
    e("v_mul_f32 v6, 0x3a000000, v6")
    e("v_cvt_f32_u32 v7, v2")
    e("v_add_f32 v8, 0x41800000, v7")
    for tau in range(2):
        for j in range(8):
            cj = ((j & 3) + 16 * (j >> 2)) / 32.0
            import struct
            lit = struct.unpack("<I", struct.pack("<f", cj))[0]
            e("v_add_f32 v9, 0x%x, v6" % lit)
            e("v_mul_f32 v9, v9, v%d" % (7 + tau))
            e("v_cos_f32 v%d, v9" % (128 + j))
            e("v_sin_f32 v%d, v9" % (136 + j))
        e("s_nop 0")
        for k in range(4):
            e("v_cvt_pk_bf16_f32 v%d, v%d, v%d" % (TW + tau * 4 + k, 128 + 2 * k, 128 + 2 * k + 1))
            e("v_cvt_pk_bf16_f32 v%d, v%d, v%d" % (TW + 8 + tau * 4 + k, 136 + 2 * k, 136 + 2 * k + 1))
        for k in range(4):
            e("v_xor_b32 v%d, 0x80008000, v%d" % (TW + 16 + tau * 4 + k, TW + tau * 4 + k))
    for i in range(32):
        e("v_mov_b32 v%d, 0" % (ZA + i))

    def b_reads(c, ks, s):
        slot = c % 4
        r = []
        for mu in range(2):
            r.append("ds_read_b128 %s, v%d offset:%d" % (vr(bx(s, mu)), XB + ks, slot * 16384 + mu * 2048))
        for T in range(3):
            r.append("ds_read_b128 %s, v%d offset:%d" % (vr(bh(s, T)), HB + ks, slot * 6144 + T * 2048))
        return r

    def b_mfma(s):
        m = []
        for T in range(3):
            for mu in range(2):
                m.append("v_mfma_f32_16x16x32_bf16 %s, %s, %s, %s" % (vr(za(mu, T)), vr(bx(s, mu)), vr(bh(s, T)), vr(za(mu, T))))
        for mu in range(2):
            m.append("v_mfma_f32_16x16x32_bf16 %s, %s, %s, %s" % (vr(GA + 4 * mu), vr(bx(s, mu)), vr(bx(s, mu)), vr(GA + 4 * mu)))
        return m

    stamp(e, opt, 5)
    e("s_waitcnt vmcnt(29)")
    e("s_barrier")
    stamp(e, opt, 6)
    for r in b_reads(0, 0, 0):
        e(r)
    e("s_waitcnt lgkmcnt(0)")
    for c in range(NCH):
        for l in interleave(b_mfma(0), b_reads(c, 1, 1), per=2):
            e(l)
        e("s_waitcnt lgkmcnt(0)")
        if c < NCH - 1:
            last_issued = min(c + 3, NCH - 1)
            allowed = 9 * (last_issued - (c + 1))
            if c < 2:
                allowed += 2
            e("s_waitcnt vmcnt(%d)" % allowed)
            e("s_barrier")
            oth = b_reads(c + 1, 0, 0)
            if c + 4 < NCH:
                oth = oth + dma(c + 4)
            for l in interleave(b_mfma(1), oth, per=2):
                e(l)
            e("s_waitcnt lgkmcnt(0)")
            if c == 3: stamp(e, opt, 7)
            if c == 6: stamp(e, opt, 8)
        else:
            for l in b_mfma(1):
                e(l)
    stamp(e, opt, 9)
    e("s_lshl_b32 s40, s4, 8")
    e("s_add_u32 s40, s40, %d" % ST_LDS)
    e("v_lshlrev_b32 v6, 2, v2")
    e("v_add_u32 v6, s40, v6")
    e("v_lshlrev_b32 v7, 4, v3")
    e("v_add_u32 v7, s40, v7")
    e("s_mov_b32 s58, 0xaaaaaaaa")
    e("s_mov_b32 s59, 0xaaaaaaaa")
    e("s_mov_b32 s60, 0xcccccccc")
    e("s_mov_b32 s61, 0xcccccccc")
    e("s_nop 2")
    for mu in range(2):
        g = GA + 4 * mu
        e("v_cndmask_b32_e64 v8, v%d, v%d, s[58:59]" % (g, g + 1))
        e("v_cndmask_b32_e64 v9, v%d, v%d, s[58:59]" % (g + 2, g + 3))
        e("v_cndmask_b32_e64 v%d, v8, v9, s[60:61]" % (10 + mu))
    e("s_mov_b32 exec_lo, 0x00f0000f")
    e("s_mov_b32 exec_hi, 0xf0000f00")
    for mu in range(2):
        e("ds_write_b32 v6, v%d offset:%d" % (10 + mu, 128 + mu * 64))
    e("s_mov_b32 exec_lo, 0x00100010")
    e("s_mov_b32 exec_hi, 0x00100010")
    for mu in range(2):
        e("ds_write_b128 v7, %s offset:%d" % (vr(za(mu, 2)), mu * 64))
    e("s_mov_b64 exec, -1")
    e("s_waitcnt lgkmcnt(0)")
    e("s_barrier")
    stamp(e, opt, 10)
    SUM = 48
    SQ = 56
    for mu in range(2):
        e("ds_read_b128 %s, v7 offset:%d" % (vr(SUM + 4 * mu), mu * 64))
        e("ds_read_b128 %s, v7 offset:%d" % (vr(SQ + 4 * mu), 128 + mu * 64))
    W2F = 128
    e("v_lshrrev_b32 v8, 2, v2")
    e("v_lshl_add_u32 v8, v3, 2, v8")
    e("v_lshlrev_b32 v8, 6, v8")
    e("v_and_b32 v9, 3, v2")
    e("v_lshl_add_u32 v8, v9, 3, v8")
    e("v_add_u32 v8, s56, v8")
    for t in range(2):
        for hh in range(2):
            e("ds_read_b64_tr_b16 %s, v8 offset:%d" % (vr(W2F + 4 * t + 2 * hh, 2), hh * 1024 + t * 32))
    e("s_mov_b32 s40, 0x3acccccd")
    e("s_mov_b32 s41, 0x3727c5ac")
    e("s_waitcnt lgkmcnt(4)")
    for k in range(8):
        e("v_mul_f32 v%d, s40, v%d" % (SUM + k, SUM + k))
        e("v_mul_f32 v%d, s40, v%d" % (SQ + k, SQ + k))
        e("v_fma_f32 v%d, -v%d, v%d, v%d" % (SQ + k, SUM + k, SUM + k, SQ + k))
        e("v_add_f32 v%d, s41, v%d" % (SQ + k, SQ + k))
        e("v_rsq_f32 v%d, v%d" % (SQ + k, SQ + k))
    e("s_nop 0")
    ZF = 64
    for T in range(3):
        for mu in range(2):
            for hh in range(2):
                a = za(mu, T) + 2 * hh
                e("v_pk_mul_f32 %s, %s, %s" % (vr(a, 2), vr(a, 2), vr(SQ + 4 * mu + 2 * hh, 2)))
        for mu in range(2):
            for hh in range(2):
                a = za(mu, T) + 2 * hh
                e("v_cvt_pk_bf16_f32 v%d, v%d, v%d" % (ZF + 4 * T + 2 * mu + hh, a, a + 1))
    e("s_waitcnt lgkmcnt(0)")
    e("v_lshlrev_b32 v9, 4, v1")
    e("s_lshl_b32 s40, s47, 3")
    e("s_lshl_b32 s41, s4, 1")
    e("s_add_u32 s40, s40, s41")
    e("s_mul_i32 s40, s40, 48")
    e("s_add_u32 s40, s40, s48")
    e("s_lshl_b32 s40, s40, 10")
    e("s_add_u32 s40, s40, 0x%x" % WS_W2T)
    e("s_add_u32 s41, s40, %d" % (48 * 1024))
    UR = 16
    def ur(t): return 16 + 4 * t
    def vv(t): return 24 + 4 * t
    def pp(t): return 32 + 4 * t
    def qq(t): return 40 + 4 * t
    def C(t): return TW + 4 * t
    def S(t): return TW + 8 + 4 * t
    def NC(t): return TW + 16 + 4 * t
    M = "v_mfma_f32_16x16x32_bf16 %s, %s, %s, %s"
    for t in range(2):
        e(M % (vr(ur(t)), vr(C(t)), vr(ZF), "0"))
        e(M % (vr(vv(t)), vr(S(t)), vr(ZF), "0"))
        e(M % (vr(pp(t)), vr(C(t)), vr(ZF + 8), "0"))
        e(M % (vr(qq(t)), vr(S(t)), vr(ZF + 8), "0"))
    for t in range(2):
        e(M % (vr(ur(t)), vr(S(t)), vr(ZF + 4), vr(ur(t))))
        e(M % (vr(vv(t)), vr(NC(t)), vr(ZF + 4), vr(vv(t))))
    e("buffer_store_dwordx4 %s, v9, s[24:27], s40 offen%s" % (vr(W2F), opt.get("wst", "")))
    e("buffer_store_dwordx4 %s, v9, s[24:27], s41 offen%s" % (vr(W2F + 4), opt.get("wst", "")))
    e("s_mov_b32 s40, %d" % (4 * 81920))
    e("v_mul_lo_u32 v10, v3, s40")
    e("v_lshl_add_u32 v10, v2, 4, v10")
    e("s_mul_i32 s40, s5, 320")
    e("s_mul_i32 s41, s6, 20")
    e("s_add_u32 s40, s40, s41")
    e("s_lshl_b32 s40, s40, 4")
    e("s_lshl_b32 s41, s4, 2")
    e("s_add_u32 s40, s40, s41")
    e("s_add_u32 s40, s40, 0x%x" % WS_U)
    e("s_nop 4")
    OU = 140
    for t in range(2):
        for i in range(4):
            e("v_add_f32_dpp v%d, v%d, v%d row_shl:8 row_mask:0xf bank_mask:0xf bound_ctrl:0" % (48 + 8 * t + i, qq(t) + i, pp(t) + i))
            e("v_subrev_f32_dpp v%d, v%d, v%d row_shl:8 row_mask:0xf bank_mask:0xf bound_ctrl:0" % (52 + 8 * t + i, pp(t) + i, qq(t) + i))
    for t in range(2):
        for i in range(4):
            e("v_cvt_pk_bf16_f32 v%d, v%d, v%d" % (OU + 4 * t + i, ur(t) + i, vv(t) + i))
    for t in range(2):
        for i in range(4):
            e("v_cvt_pk_bf16_f32 v%d, v%d, v%d" % (OU + 8 + 4 * t + i, 48 + 8 * t + i, 52 + 8 * t + i))
    for t in range(2):
        for i in range(4):
            e("s_add_u32 s41, s40, %d" % ((16 * t + i) * 81920))
            e("buffer_store_dword v%d, v10, s[24:27], s41 offen%s" % (OU + 4 * t + i, opt.get("ust", "")))
    e("s_mov_b32 exec_lo, 0x000f000f")
    e("s_mov_b32 exec_hi, 0x000f000f")
    for t in range(2):
        for i in range(4):
            e("s_add_u32 s41, s40, %d" % ((16 * t + i) * 81920))
            e("buffer_store_dword v%d, v10, s[24:27], s41 offen offset:256%s" % (OU + 8 + 4 * t + i, opt.get("ust", "")))
    stamp(e, opt, 11)
    prof_out(e, opt, 0, 8, 3, 24)
    e("L1_END:")
    e("s_endpgm")
    return e.text()


HEAD = """; Kernarg layout for this problem (88 bytes, ptrs only, base s[0:1]):
"""


def kernel_wrap(name, body, vgpr=256, sgpr=102, accum=None):
    accum = accum or vgpr
    txt = ".globl %s\n.p2align 8\n.type %s,@function\n%s:\n%s" % (name, name, name, body)
    desc = """.p2align 6
.amdhsa_kernel %s
  .amdhsa_next_free_vgpr %d
  .amdhsa_next_free_sgpr %d
  .amdhsa_accum_offset %d
  .amdhsa_group_segment_fixed_size 0
  .amdhsa_kernarg_size 88
  .amdhsa_user_sgpr_count 2
  .amdhsa_user_sgpr_kernarg_segment_ptr 1
  .amdhsa_system_sgpr_workgroup_id_x 1
.end_amdhsa_kernel
""" % (name, vgpr, sgpr, accum)
    return txt, desc


def build(opt=None, only_l1=False):
    global PROF_ON
    opt = opt or {}
    PROF_ON = bool(opt.get("prof"))
    k1 = KN + "_kernel"
    k2 = "fnet_l2_kernel"
    launches = ["; @launch kernel=%s grid=(256,1,1) block=(512,1,1) lds=%d" % (k1, L1_LDS)]
    t1, d1 = kernel_wrap(k1, gen_l1(opt))
    txt = [t1]
    desc = [d1]
    if not only_l1:
        from gen2 import gen_l2, L2_LDS, L2_BLOCK, L2_VGPR, L2_ACC
        launches.append("; @launch kernel=%s grid=(256,1,1) block=(%d,1,1) lds=%d" % (k2, L2_BLOCK, L2_LDS))
        t2, d2 = kernel_wrap(k2, gen_l2(opt), vgpr=L2_VGPR, accum=L2_ACC)
        txt.append(t2)
        desc.append(d2)
    s = HEAD + "\n".join(launches) + "\n.amdgcn_target \"amdgcn-amd-amdhsa--gfx950\"\n.text\n" + "\n".join(txt)
    s += ".section .rodata,\"a\"\n" + "".join(desc)
    return s


if __name__ == "__main__":
    only = len(sys.argv) > 1 and sys.argv[1] == "l1"
    s = build({}, only_l1=only)
    out = "cdna_kernels/%s.s" % KN if not only else "l1.s"
    open(out, "w").write(s)
    print("wrote", out, len(s))
```

```python
from gen import E, vr, srd, interleave, stamp, prof_out, WS_H, WS_U, WS_W2T, WS_END

NS = 6
SLOT = 20480
U_LDS = NS * SLOT
L2_LDS = U_LDS + 20480
L2_BLOCK = 256
L2_VGPR = 512
L2_ACC = 256


def ar(b, n=4):
    return "a[%d:%d]" % (b, b + n - 1)


def gen_l2(opt):
    e = E()
    NCH = 12
    M = "v_mfma_f32_16x16x32_bf16 %s, %s, %s, %s"
    e("s_cmp_ge_u32 s2, 256")
    e("s_cbranch_scc1 L2_END")
    stamp(e, opt, 0, real=True)
    stamp(e, opt, 1)
    e("s_load_dwordx2 s[28:29], s[0:1], 0")
    e("s_load_dwordx2 s[30:31], s[0:1], 64")
    e("s_load_dwordx2 s[32:33], s[0:1], 80")
    e("v_lshrrev_b32 v2, 6, v0")
    e("v_and_b32 v1, 63, v0")
    e("v_readfirstlane_b32 s3, v2")
    e("s_and_b32 s40, s2, 7")
    e("s_lshr_b32 s41, s2, 3")
    e("s_lshr_b32 s4, s40, 1")
    e("s_lshl_b32 s4, s4, 3")
    e("s_and_b32 s42, s41, 7")
    e("s_add_u32 s4, s4, s42")
    e("s_and_b32 s5, s40, 1")
    e("s_lshl_b32 s5, s5, 2")
    e("s_lshr_b32 s42, s41, 3")
    e("s_add_u32 s5, s5, s42")
    e("s_lshr_b32 s6, s3, 1")
    e("s_and_b32 s7, s3, 1")
    e("v_and_b32 v2, 15, v1")
    e("v_lshrrev_b32 v3, 4, v1")
    e("v_lshlrev_b32 v4, 4, v1")
    e("s_mul_i32 s35, s5, 80")
    e("s_sub_u32 s40, 640, s35")
    e("s_sub_u32 s41, 32, s4")
    e("s_and_b32 s41, s41, 31")
    e("s_cmp_eq_u32 s4, 0")
    e("s_cselect_b32 s42, 64, 63")
    e("s_cmp_ge_u32 s5, 4")
    e("s_cselect_b32 s34, -1, 1")
    e("s_cselect_b32 s35, s40, s35")
    e("s_cselect_b32 s36, s41, s4")
    e("s_cselect_b32 s37, s42, 0")
    e("v_mul_lo_u32 v5, v2, s34")
    e("v_mul_u32_u24 v6, 5120, v3")
    e("s_lshl_b32 s40, s34, 4")
    e("s_mov_b32 s41, s35")
    for n in range(5):
        e("v_add_u32 v7, s41, v5")
        if n == 0:
            e("v_cmp_ne_u32 vcc, 320, v7")
            e("s_nop 1")
            e("v_cndmask_b32 v7, 0, v7, vcc")
        e("v_lshl_add_u32 v%d, v7, 4, v6" % (8 + n))
        if n < 4:
            e("s_add_u32 s41, s41, s40")
    e("s_lshl_b32 s38, s36, 4")
    e("s_lshl_b32 s40, s3, 2")
    e("s_add_u32 s38, s38, s40")
    e("s_mul_i32 s38, s38, 5120")
    e("s_add_u32 s38, s38, 0x%x" % WS_U)
    e("s_mul_i32 s40, s5, 5")
    e("s_add_u32 s41, s40, s3")
    e("s_mul_i32 s20, s41, 49152")
    e("s_add_u32 s20, s20, 0x%x" % WS_W2T)
    e("s_add_u32 s41, s40, 4")
    e("s_mul_i32 s21, s41, 49152")
    e("s_lshl_b32 s41, s3, 10")
    e("s_add_u32 s21, s21, s41")
    e("s_add_u32 s21, s21, 0x%x" % WS_W2T)
    e("s_lshl_b32 s40, s6, 5")
    e("s_add_u32 s40, s40, s4")
    e("s_lshl_b32 s40, s40, 1")
    e("s_add_u32 s40, s40, s7")
    e("s_mul_i32 s22, s40, 49152")
    e("s_lshl_b32 s23, s3, 12")
    e("s_lshl_b32 s24, s3, 10")
    e("s_add_u32 s24, s24, 16384")
    e("s_mov_b32 s25, 0")
    if opt.get("krot2"):
        e(opt["krot2"])
    e("s_mov_b32 s26, s25")
    e("s_waitcnt lgkmcnt(0)")
    stamp(e, opt, 2)
    srd(e, 8, 32, WS_END)
    srd(e, 12, 28, 2048 * 1280)
    srd(e, 16, 30, 2048 * 1280)

    HR = 0
    def hreg(c, q): return HR + (c % 7) * 16 + q * 4

    def dma_w(c):
        slot = c % NS
        r = []
        r.append("s_add_u32 s40, s20, s25\ns_add_u32 m0, s23, %d\ns_add_u32 s41, s21, s25" % (slot * SLOT))
        for q in range(4):
            r.append("buffer_load_dwordx4 v4, s[8:11], s40 offen offset:%d lds" % (q * 1024))
        r.append("s_add_u32 m0, s24, %d\ns_add_u32 s25, s25, 4096\nbuffer_load_dwordx4 v4, s[8:11], s41 offen lds" % (slot * SLOT))
        r.append("s_cmp_eq_u32 s25, 49152\ns_cselect_b32 s25, 0, s25")
        return r

    def ld_h(c):
        r = []
        r.append("s_add_u32 s42, s22, s26\ns_add_u32 s26, s26, 4096")
        for q in range(4):
            r.append("buffer_load_dwordx4 %s, v4, s[8:11], s42 offen offset:%d" % (ar(hreg(c, q)), q * 1024))
        r.append("s_cmp_eq_u32 s26, 49152\ns_cselect_b32 s26, 0, s26")
        return r

    e("s_lshl_b32 s40, s3, 10")
    e("s_add_u32 s40, s40, %d" % U_LDS)
    for n in range(5):
        e("s_add_u32 m0, s40, %d" % (n * 4096))
        e("s_nop 0")
        e("buffer_load_dwordx4 v%d, s[8:11], s38 offen lds" % (8 + n))
    stamp(e, opt, 3)
    PRE = opt.get("pre2", 2)
    YB = opt.get("yb2", 9)
    HB = opt.get("hb2", 6)
    issued = [-1] * 5
    queue = []
    for c in range(NCH):
        ew = -2 if c < NS else 2 * (c - NS) + 1
        eh = -2 if c < 7 else 2 * (c - 7) + 2
        for l in dma_w(c):
            queue.append((c, ew, l))
        for l in ld_h(c):
            queue.append((c, eh, l))
    def nl(t): return sum(1 for x in t.split("\n") if x.startswith("buffer_load"))
    def take(pos, budget, maxchunk=99):
        out = []
        n = 0
        while queue and queue[0][1] <= pos and queue[0][0] <= maxchunk:
            k = nl(queue[0][2])
            if n + k > budget and k > 0:
                break
            c, _, t = queue.pop(0)
            out.append(t)
            issued.extend([c] * k)
            n += k
        return out
    def allowed_after(c):
        last = max(i for i, t in enumerate(issued) if t <= c)
        return len(issued) - 1 - last
    for l in take(-2, 999, PRE - 1):
        e(l)
    stamp(e, opt, 4)
    AO = 16
    AY = 36
    FR = [56, 96]
    WQ = 136
    XP = 152
    VL = 14
    def fw(s, k, n): return FR[s] + (k * 5 + n) * 4

    e("s_lshl_b32 s40, s7, 5")
    e("s_add_u32 s40, s40, s6")
    e("v_lshlrev_b32 v5, 1, v2")
    e("v_add_u32 v5, s40, v5")
    e("v_mul_lo_u32 v5, v5, s34")
    e("v_add_u32 v5, s37, v5")
    e("v_and_b32 v5, 63, v5")
    e("v_cvt_f32_u32 v5, v5")
    e("v_mul_f32 v5, 0x3c800000, v5")
    e("v_lshlrev_b32 v6, 2, v3")
    e("v_cvt_f32_u32 v6, v6")
    import struct
    for kk in range(4):
        for q in range(4):
            lit = struct.unpack("<I", struct.pack("<f", float(16 * kk + q)))[0]
            e("v_add_f32 v7, 0x%x, v6" % lit)
            e("v_mul_f32 v7, v7, v5")
            e("v_cos_f32 v%d, v7" % (176 + q))
            e("v_sin_f32 v%d, v7" % (180 + q))
        e("s_nop 0")
        for q in range(4):
            e("v_cvt_pk_bf16_f32 v%d, v%d, -v%d" % (WQ + kk * 4 + q, 176 + q, 180 + q))
    for i in range(40):
        e("v_mov_b32 v%d, 0" % (AO + i))
    e("v_mov_b32 v%d, v4" % VL)
    e("v_add_u32 v%d, %d, v4" % (VL + 1, 3 * SLOT))
    e("v_add_u32 v13, %d, v4" % U_LDS)

    def w_reads(c, half, s):
        slot = c % NS
        r = []
        for k in range(2):
            for n in range(5):
                r.append("ds_read_b128 %s, v%d offset:%d" % (vr(fw(s, k, n)), VL + slot // 3, (slot % 3) * SLOT + n * 4096 + (2 * half + k) * 1024))
        return r

    def o_mfma(c, half, s):
        m = []
        for k in range(2):
            for n in range(5):
                m.append(M % (vr(AO + 4 * n), vr(fw(s, k, n)), ar(hreg(c, 2 * half + k)), vr(AO + 4 * n)))
        return m

    stamp(e, opt, 5)
    e("s_waitcnt vmcnt(%d)" % allowed_after(0))
    e("s_barrier")
    stamp(e, opt, 6)
    for kk in range(4):
        for n in range(5):
            e("ds_read_b128 %s, v13 offset:%d" % (vr(fw(kk // 2, kk % 2, n)), n * 4096 + kk * 1024))
    e("s_waitcnt lgkmcnt(10)")
    ym = []
    for kk in range(2):
        for n in range(5):
            ym.append(M % (vr(AY + 4 * n), vr(fw(0, kk, n)), vr(WQ + 4 * kk), vr(AY + 4 * n)))
    for l in interleave(ym, take(-1, YB // 2), per=1):
        e(l)
    e("s_waitcnt lgkmcnt(0)")
    ym = []
    for kk in range(2, 4):
        for n in range(5):
            ym.append(M % (vr(AY + 4 * n), vr(fw(1, kk - 2, n)), vr(WQ + 4 * kk), vr(AY + 4 * n)))
    for l in interleave(ym, w_reads(0, 0, 0) + take(-1, YB - YB // 2), per=2):
        e(l)
    e("s_waitcnt lgkmcnt(0)")

    stamp(e, opt, 7)
    def x_setup():
        r = []
        s = []
        s.append("s_lshl_b32 s43, s7, 10\ns_lshl_b32 s44, s6, 5\ns_add_u32 s43, s43, s44\ns_add_u32 s43, s43, s4\ns_mul_i32 s43, s43, 1280\ns_mul_i32 s44, s5, 160\ns_add_u32 s43, s43, s44")
        r += s
        for rr in range(3):
            r.append("v_add_u32 v184, %d, v1\nv_mul_u32_u24 v185, 205, v184\nv_lshrrev_b32 v185, 11, v185\nv_mul_u32_u24 v186, 10, v185\nv_sub_u32 v186, v184, v186" % (64 * rr))
            r.append("v_mul_u32_u24 v187, 0x14000, v185\nv_lshl_add_u32 v%d, v186, 4, v187\nv_mul_u32_u24 v187, 336, v185\nv_lshl_add_u32 v%d, v186, 5, v187" % (176 + rr, 180 + rr))
        for rr in range(3):
            if rr == 2:
                r.append("s_mov_b32 exec_hi, 0\nbuffer_load_dwordx4 %s, v%d, s[12:15], s43 offen\ns_mov_b32 exec_hi, -1" % (vr(XP + 4 * rr), 176 + rr))
            else:
                r.append("buffer_load_dwordx4 %s, v%d, s[12:15], s43 offen" % (vr(XP + 4 * rr), 176 + rr))
        return r

    for c in range(NCH):
        oth = w_reads(c, 1, 1) + take(2 * c, HB)
        for l in interleave(o_mfma(c, 0, 0), oth, per=2):
            e(l)
        e("s_waitcnt lgkmcnt(0)")
        if c < NCH - 1:
            e("s_waitcnt vmcnt(%d)" % min(63, allowed_after(c + 1)))
            e("s_barrier")
            oth = w_reads(c + 1, 0, 0) + take(2 * c + 1, HB)
            if c == opt.get("xc2", 7):
                oth = oth + x_setup()
                issued.extend([99] * 3)
            for l in interleave(o_mfma(c, 1, 1), oth, per=2):
                e(l)
            e("s_waitcnt lgkmcnt(0)")
            if c == 3: stamp(e, opt, 8)
            if c == 7: stamp(e, opt, 9)
        else:
            for l in o_mfma(c, 1, 1):
                e(l)
    assert not queue, queue
    stamp(e, opt, 10)
    e("s_cmp_eq_u32 s5, 0")
    e("s_cselect_b32 s44, 0xffff, 0")
    e("s_mov_b32 s45, 0")
    e("s_mov_b32 s40, 0xbfb8aa3b")
    e("v_mov_b32 v188, s40")
    e("v_mov_b32 v189, s40")
    e("v_mov_b32 v190, 1.0")
    e("v_mov_b32 v191, 1.0")
    e("v_cndmask_b32_e64 v%d, v%d, 0, s[44:45]" % (AY, AY))
    e("s_mul_i32 s46, s3, %d" % SLOT)
    e("v_mul_u32_u24 v5, 336, v2")
    e("v_lshl_add_u32 v5, v3, 4, v5")
    e("v_add_u32 v5, s46, v5")
    for rr in range(3):
        e("v_add_u32 v%d, s46, v%d" % (180 + rr, 180 + rr))
    Z = 56
    e("s_nop 1")
    for k in range(10):
        e("v_pk_mul_f32 %s, %s, v[188:189]" % (vr(Z + 2 * k, 2), vr(AO + 2 * k, 2)))
    for k in range(20):
        e("v_exp_f32 v%d, v%d" % (Z + k, Z + k))
    for k in range(10):
        e("v_pk_mul_f32 %s, %s, %s" % (vr(AY + 2 * k, 2), vr(AY + 2 * k, 2), vr(AO + 2 * k, 2)))
    for k in range(10):
        e("v_pk_add_f32 %s, %s, v[190:191]" % (vr(Z + 2 * k, 2), vr(Z + 2 * k, 2)))
    for k in range(20):
        e("v_rcp_f32 v%d, v%d" % (Z + k, Z + k))
    e("s_nop 0")
    for n in range(5):
        for hh in range(2):
            k = 2 * n + hh
            e("v_pk_mul_f32 %s, %s, %s" % (vr(AY + 2 * k, 2), vr(AY + 2 * k, 2), vr(Z + 2 * k, 2)))
        e("ds_write_b128 v5, %s offset:%d" % (vr(AY + 4 * n), n * 64))
    e("s_waitcnt lgkmcnt(0)")
    stamp(e, opt, 11)
    PB = 96
    for rr in range(3):
        e("ds_read_b128 %s, v%d" % (vr(PB + 8 * rr), 180 + rr))
        e("ds_read_b128 %s, v%d offset:16" % (vr(PB + 8 * rr + 4), 180 + rr))
    XU = 192
    e("s_waitcnt vmcnt(0)")
    for rr in range(3):
        for k in range(4):
            e("v_lshlrev_b32 v%d, 16, v%d" % (XU + 8 * rr + 2 * k, XP + 4 * rr + k))
            e("v_and_b32 v%d, 0xffff0000, v%d" % (XU + 8 * rr + 2 * k + 1, XP + 4 * rr + k))
    e("s_waitcnt lgkmcnt(0)")
    for rr in range(3):
        for k in range(4):
            e("v_pk_add_f32 %s, %s, %s" % (vr(XU + 8 * rr + 2 * k, 2), vr(XU + 8 * rr + 2 * k, 2), vr(PB + 8 * rr + 2 * k, 2)))
        for k in range(4):
            e("v_cvt_pk_bf16_f32 v%d, v%d, v%d" % (XP + 4 * rr + k, XU + 8 * rr + 2 * k, XU + 8 * rr + 2 * k + 1))
        if rr == 2:
            e("s_mov_b32 exec_hi, 0")
        e("buffer_store_dwordx4 %s, v%d, s[16:19], s43 offen" % (vr(XP + 4 * rr), 176 + rr))
    stamp(e, opt, 12)
    prof_out(e, opt, 1, 4, 3, 8)
    e("L2_END:")
    e("s_endpgm")
    return e.text()
```

```python
import sys, json
from gen import build
name = sys.argv[1]
opt = json.loads(sys.argv[2]) if len(sys.argv) > 2 else {}
s = build(opt)
open("cdna_kernels/%s.s" % name, "w").write(s)
print("wrote", name, len(s))
```

```python
import sys
KN = "recurrent_scan__spectral_fnet__dense_activation_silu__prompt"

WS_H = 0
WS_U = 0x600000
WS_W2T = 0x880000
WS_END = 0xA60000


PROF_ON = False


class E:
    def __init__(self):
        self.L = []

    def __call__(self, s):
        for x in s.split("\n"):
            x = x.strip()
            if x:
                self.L.append(x)

    def text(self):
        return "\n".join(("" if l.endswith(":") else "  ") + l for l in self.L) + "\n"


def vr(b, n=4):
    return "v[%d:%d]" % (b, b + n - 1)


def srd(e, d, lo, nbytes):
    if nbytes == WS_END and PROF_ON:
        nbytes = 0x1000000
    e("s_mov_b32 s%d, s%d" % (d, lo))
    e("s_mov_b32 s%d, s%d" % (d + 1, lo + 1))
    e("s_mov_b32 s%d, 0x%x" % (d + 2, nbytes))
    e("s_mov_b32 s%d, 0x00020000" % (d + 3))


PROF_BASE = 0xB00000


def stamp(e, opt, i, real=False):
    if opt.get("prof"):
        e("%s s[%d:%d]" % ("s_memrealtime" if real else "s_memtime", 70 + 2 * i, 71 + 2 * i))


def prof_out(e, opt, kern, nwaves, wave_sreg, srd0, n=16, vb=240):
    if not opt.get("prof"):
        return
    e("s_mov_b64 exec, -1")
    e("s_waitcnt vmcnt(0)")
    stamp(e, opt, n - 2)
    stamp(e, opt, n - 1, real=True)
    e("s_waitcnt lgkmcnt(0)")
    e("s_mul_i32 s68, s2, %d" % nwaves)
    e("s_add_u32 s68, s68, s%d" % wave_sreg)
    e("s_lshl_b32 s68, s68, 6")
    e("s_add_u32 s68, s68, 0x%x" % (PROF_BASE + kern * 0x40000))
    e("v_mov_b32 v%d, 0" % (vb + 4))
    for i in range(n):
        e("v_mov_b32 v%d, s%d" % (vb + (i % 4), 70 + 2 * i))
        if i % 4 == 3:
            e("s_mov_b64 exec, 1")
            e("buffer_store_dwordx4 v[%d:%d], v%d, s[%d:%d], s68 offen offset:%d" % (vb, vb + 3, vb + 4, srd0, srd0 + 3, (i // 4) * 16))
            e("s_waitcnt vmcnt(0)")
            e("s_mov_b64 exec, -1")


def interleave(mf, other, per=2, start=0):
    out = []
    o = list(other)
    for i, m in enumerate(mf):
        out.append(m)
        if i >= start:
            for _ in range(per):
                if o:
                    out.append(o.pop(0))
    out += o
    return out


X_LDS = 0
W1_LDS = 65536
H_LDS = 114688
W2S_LDS = 139264
ST_LDS = 147456
CS_LDS = 148480
L1_LDS = 148864


def rot_calc(e, opt):
    a, b, q, p = opt["rot3"]
    e("s_lshr_b32 s40, s2, 5")
    e("s_mul_i32 s40, s40, %d" % a)
    e("s_lshr_b32 s41, s2, 3")
    e("s_and_b32 s41, s41, 3")
    e("s_mul_i32 s41, s41, %d" % b)
    e("s_add_u32 s40, s40, s41")
    e("s_lshr_b32 s41, s2, 1")
    e("s_and_b32 s41, s41, 3")
    e("s_mul_i32 s41, s41, %d" % q)
    e("s_add_u32 s40, s40, s41")
    e("s_and_b32 s41, s2, 1")
    e("s_mul_i32 s41, s41, %d" % p)
    e("s_add_u32 s40, s40, s41")
    e("s_mul_i32 s41, s40, 205")
    e("s_lshr_b32 s41, s41, 11")
    e("s_mul_i32 s41, s41, 10")
    e("s_sub_u32 s62, s40, s41")


def gen_l1(opt):
    e = E()
    NCH = 10
    e("s_cmp_ge_u32 s2, 256")
    e("s_cbranch_scc1 L1_END")
    stamp(e, opt, 0, real=True)
    stamp(e, opt, 1)
    e("s_load_dwordx2 s[28:29], s[0:1], 0")
    e("s_load_dwordx2 s[30:31], s[0:1], 24")
    e("s_load_dwordx2 s[32:33], s[0:1], 32")
    e("s_load_dwordx2 s[34:35], s[0:1], 48")
    e("s_load_dwordx2 s[36:37], s[0:1], 56")
    e("s_load_dwordx2 s[38:39], s[0:1], 80")
    e("v_lshrrev_b32 v2, 6, v0")
    e("v_and_b32 v1, 63, v0")
    e("v_readfirstlane_b32 s3, v2")
    e("s_and_b32 s40, s2, 7")
    e("s_lshr_b32 s41, s2, 3")
    e("s_lshr_b32 s5, s40, 1")
    e("s_lshl_b32 s5, s5, 2")
    e("s_and_b32 s42, s41, 3")
    e("s_add_u32 s5, s5, s42")
    e("s_and_b32 s6, s40, 1")
    e("s_lshl_b32 s6, s6, 3")
    e("s_lshr_b32 s42, s41, 2")
    e("s_add_u32 s6, s6, s42")
    e("s_and_b32 s4, s3, 3")
    e("s_lshl_b32 s7, s5, 2")
    e("s_add_u32 s7, s7, s4")
    e("v_and_b32 v2, 15, v1")
    e("v_lshrrev_b32 v3, 4, v1")
    e("v_lshrrev_b32 v6, 1, v2")
    e("v_xor_b32 v6, v6, v3")
    e("v_lshlrev_b32 v6, 4, v6")
    e("v_lshl_add_u32 v4, v2, 7, v6")
    e("v_xor_b32 v5, 64, v4")
    if opt.get("lonly"):
        e("s_cmp_lt_u32 s3, 8")
        e("s_cbranch_scc1 L1_END")
    e("s_cmp_ge_u32 s3, 4")
    e("s_cbranch_scc1 L1_B")

    ACC = 16
    CSA = 64
    FR = [72, 104]
    ONES = 136
    XA = 140
    WA = 142
    def acc(mu, p, u): return ACC + ((mu * 3 + p) * 2 + u) * 4
    def fx(s, mu): return FR[s] + mu * 4
    def fw(s, p, u): return FR[s] + 8 + (p * 2 + u) * 4
    e("s_cmp_eq_u32 s4, 3")
    e("s_cselect_b32 s8, 0, s4")
    e("s_lshl_b32 s40, s4, 12")
    e("v_add_u32 v%d, s40, v4" % XA)
    e("v_add_u32 v%d, s40, v5" % (XA + 1))
    e("v_lshrrev_b32 v6, 2, v2")
    e("v_lshl_add_u32 v6, v3, 3, v6")
    e("v_mul_u32_u24 v6, 192, v6")
    e("v_and_b32 v7, 1, v2")
    e("v_lshl_add_u32 v6, v7, 3, v6")
    e("v_lshrrev_b32 v7, 1, v2")
    e("v_and_b32 v7, 1, v7")
    e("v_and_b32 v8, 1, v3")
    e("v_lshlrev_b32 v8, 1, v8")
    e("v_xor_b32 v7, v7, v8")
    e("v_lshl_add_u32 v6, v7, 4, v6")
    e("v_xor_b32 v7, 32, v6")
    for p in range(3):
        e("s_add_u32 s40, s8, %d" % p)
        e("s_cmp_ge_u32 s40, 3")
        e("s_cselect_b32 s41, 3, 0")
        e("s_sub_u32 s40, s40, s41")
        e("s_mov_b32 s%d, s40" % (44 + p))
        e("s_lshl_b32 s40, s40, 6")
        e("s_add_u32 s40, s40, %d" % W1_LDS)
        e("v_add_u32 v%d, s40, v6" % (WA + 2 * p))
        e("v_add_u32 v%d, s40, v7" % (WA + 2 * p + 1))
    for i in range(48 + 8):
        e("v_mov_b32 v%d, 0" % (ACC + i))
    for i in range(4):
        e("v_mov_b32 v%d, 0x3f803f80" % (ONES + i))

    def a_reads(c, ks, s):
        slot = c % 4
        r = []
        for mu in range(2):
            r.append("ds_read_b128 %s, v%d offset:%d" % (vr(fx(s, mu)), XA + ks, slot * 16384 + mu * 2048))
        for p in range(3):
            for u in range(2):
                for h in range(2):
                    r.append("ds_read_b64_tr_b16 %s, v%d offset:%d" % (vr(fw(s, p, u) + 2 * h, 2), WA + 2 * p + u, slot * 12288 + ks * 6144 + h * 768))
        return r

    def a_mfma(s):
        m = []
        for p in range(3):
            for u in range(2):
                for mu in range(2):
                    m.append("v_mfma_f32_16x16x32_bf16 %s, %s, %s, %s" % (vr(acc(mu, p, u)), vr(fw(s, p, u)), vr(fx(s, mu)), vr(acc(mu, p, u))))
                if p == 0:
                    m.append("v_mfma_f32_16x16x32_bf16 %s, %s, %s, %s" % (vr(CSA + 4 * u), vr(fw(s, 0, u)), vr(ONES), vr(CSA + 4 * u)))
        return m

    PF = opt.get("pf", 1)
    if PF:
        for _ in range(opt.get("np", 1)):
            e("s_barrier")
    stamp(e, opt, 5)
    e("s_barrier")
    if opt.get("pfonly"):
        e("s_endpgm")
    stamp(e, opt, 6)
    for r in a_reads(0, 0, 0):
        e(r)
    e("s_waitcnt lgkmcnt(0)")
    for c in range(NCH):
        for l in interleave(a_mfma(0), a_reads(c, 1, 1), per=2):
            e(l)
        e("s_waitcnt lgkmcnt(0)")
        if c < NCH - 1:
            e("s_barrier")
            for l in interleave(a_mfma(1), a_reads(c + 1, 0, 0), per=2):
                e(l)
            e("s_waitcnt lgkmcnt(0)")
            if c == 3: stamp(e, opt, 7)
            if c == 6: stamp(e, opt, 8)
        else:
            for l in a_mfma(1):
                e(l)
    stamp(e, opt, 9)
    T = 148
    e("v_lshlrev_b32 v6, 4, v3")
    e("s_lshl_b32 s40, s8, 7")
    e("s_add_u32 s40, s40, %d" % CS_LDS)
    e("v_add_u32 v7, s40, v6")
    e("s_lshl_b32 s40, s4, 8")
    e("s_add_u32 s40, s40, %d" % ST_LDS)
    e("v_lshlrev_b32 v8, 2, v2")
    e("v_add_u32 v8, s40, v8")
    for p in range(3):
        e("s_lshl_b32 s40, s%d, 7" % (44 + p))
        e("s_add_u32 s40, s40, %d" % CS_LDS)
        e("v_add_u32 v%d, s40, v6" % (9 + p))
    e("v_lshlrev_b32 v12, 4, v1")
    e("s_mov_b32 exec_lo, 0x00010001")
    e("s_mov_b32 exec_hi, 0x00010001")
    e("s_nop 4")
    e("ds_write_b128 v7, %s" % vr(CSA))
    e("ds_write_b128 v7, %s offset:64" % vr(CSA + 4))
    e("s_mov_b64 exec, -1")
    srd(e, 24, 38, WS_END)
    e("s_waitcnt lgkmcnt(0)")
    e("s_barrier")
    stamp(e, opt, 10)
    for mu in range(2):
        e("ds_read_b32 v%d, v8 offset:%d" % (72 + 2 * mu, mu * 64))
        e("ds_read_b32 v%d, v8 offset:%d" % (76 + 2 * mu, 128 + mu * 64))
    CSR = 80
    for p in range(3):
        for u in range(2):
            e("ds_read_b128 %s, v%d offset:%d" % (vr(CSR + (p * 2 + u) * 4), 9 + p, u * 64))
    e("s_mov_b32 s40, 0x3acccccd")
    e("s_mov_b32 s41, 0x3727c5ac")
    e("s_mov_b32 s42, 0xbfb8aa3b")
    e("v_mov_b32 v104, 1.0")
    e("v_mov_b32 v105, 1.0")
    e("s_waitcnt lgkmcnt(6)")
    for mu in range(2):
        m, q = 72 + 2 * mu, 76 + 2 * mu
        e("v_mul_f32 v%d, s40, v%d" % (m, m))
        e("v_mul_f32 v%d, s40, v%d" % (q, q))
        e("v_fma_f32 v%d, -v%d, v%d, v%d" % (q, m, m, q))
        e("v_add_f32 v%d, s41, v%d" % (q, q))
        e("v_rsq_f32 v%d, v%d" % (q, q))
    e("s_nop 0")
    for mu in range(2):
        q = 76 + 2 * mu
        e("v_mul_f32 v%d, s42, v%d" % (106 + 2 * mu, q))
    e("s_waitcnt lgkmcnt(0)")
    e("s_mul_i32 s40, s7, 96")
    e("s_mul_i32 s41, s6, 3")
    e("s_add_u32 s40, s40, s41")
    TT = 112
    ZZ = 120
    OUT = 128
    n = 0
    for mu in range(2):
        m, r_, rn = 72 + 2 * mu, 76 + 2 * mu, 106 + 2 * mu
        for p in range(3):
            for u in range(2):
                for hh in range(2):
                    a = acc(mu, p, u) + 2 * hh
                    cs = CSR + (p * 2 + u) * 4 + 2 * hh
                    t = TT + u * 4 + hh * 2
                    e("v_pk_fma_f32 %s, %s, %s, %s op_sel_hi:[1,0,1] neg_lo:[0,1,0] neg_hi:[0,1,0]" % (vr(t, 2), vr(cs, 2), vr(m, 2), vr(a, 2)))
            for k in range(4):
                e("v_pk_mul_f32 %s, %s, %s op_sel_hi:[1,0]" % (vr(ZZ + 2 * k, 2), vr(TT + 2 * k, 2), vr(rn, 2)))
            for k in range(8):
                e("v_exp_f32 v%d, v%d" % (ZZ + k, ZZ + k))
            for k in range(4):
                e("v_pk_mul_f32 %s, %s, %s op_sel_hi:[1,0]" % (vr(TT + 2 * k, 2), vr(TT + 2 * k, 2), vr(r_, 2)))
            for k in range(4):
                e("v_pk_add_f32 %s, %s, v[104:105]" % (vr(ZZ + 2 * k, 2), vr(ZZ + 2 * k, 2)))
            for k in range(8):
                e("v_rcp_f32 v%d, v%d" % (ZZ + k, ZZ + k))
            e("s_add_u32 s41, s40, s%d" % (44 + p))
            e("s_add_u32 s41, s41, %d" % (mu * 48))
            e("s_lshl_b32 s41, s41, 10")
            for k in range(4):
                e("v_pk_mul_f32 %s, %s, %s" % (vr(TT + 2 * k, 2), vr(TT + 2 * k, 2), vr(ZZ + 2 * k, 2)))
            o = OUT + 4 * n
            for k in range(4):
                e("v_cvt_pk_bf16_f32 v%d, v%d, v%d" % (o + k, TT + 2 * k, TT + 2 * k + 1))
            e("buffer_store_dwordx4 %s, v12, s[24:27], s41 offen%s" % (vr(o), opt.get("hst", "")))
            n += 1
            if n == opt.get("be2", 4):
                e("s_barrier")
    stamp(e, opt, 11)
    prof_out(e, opt, 0, 12, 3, 24, vb=160)
    e("s_endpgm")

    e("L1_B:")
    e("s_cmp_ge_u32 s3, 8")
    e("s_cbranch_scc1 L1_L")
    ZA = 16
    GA = 40
    FB = [48, 68]
    TW = 88
    XB = 121
    HB = 123
    UW = 125
    UR_ = 112
    UG = 115
    def za(mu, T): return ZA + (mu * 3 + T) * 4
    def bx(s, mu): return FB[s] + mu * 4
    def bh(s, T): return FB[s] + 8 + T * 4
    NPF0 = opt.get("npf0", 3)
    pfq = list(range(10))
    def pf_one():
        pfq.pop(0)
        t = "s_mul_i32 s64, s62, s65\n"
        if opt.get("pfm"):
            t += "s_mov_b64 exec, s[66:67]\nbuffer_load_dword v153, v152, s[8:11], s64 offen\ns_mov_b64 exec, -1\n"
        else:
            t += "buffer_load_dword v153, v152, s[8:11], s64 offen\n"
        t += "s_add_u32 s62, s62, 1\ns_cmp_eq_u32 s62, 10\ns_cselect_b32 s62, 0, s62"
        return t
    if PF:
        if opt.get("rot3"):
            rot_calc(e, opt)
        else:
            e("s_mov_b32 s62, 0")
        e("s_lshr_b32 s40, s2, 3")
        e("s_and_b32 s41, s2, 1")
        e("s_mov_b32 s64, 0")
        e("s_mov_b32 s66, 0x55555555")
        e("s_mov_b32 s67, 0x55555555")
        e("s_cmp_eq_u32 s4, 0")
        e("s_cbranch_scc1 L1_BPX")
        e("s_cmp_eq_u32 s4, 1")
        e("s_cbranch_scc1 L1_BPW")
        e("s_mul_i32 s42, s41, 160")
        e("s_mul_i32 s43, s40, 5")
        e("s_add_u32 s42, s42, s43")
        e("s_mul_i32 s42, s42, 1280")
        e("v_lshrrev_b32 v152, 1, v1")
        e("v_min_u32 v152, 4, v152")
        e("v_mul_u32_u24 v152, 1280, v152")
        e("v_and_b32 v153, 1, v1")
        e("v_lshl_add_u32 v152, v153, 6, v152")
        e("v_add_u32 v152, s42, v152")
        e("s_mov_b32 s65, 128")
        e("s_mov_b32 s66, 0x155")
        e("s_mov_b32 s67, 0")
        e("s_waitcnt lgkmcnt(0)")
        e("s_cmp_eq_u32 s4, 2")
        e("s_cselect_b32 s8, s30, s32")
        e("s_cselect_b32 s9, s31, s33")
        e("s_mov_b32 s10, %d" % (640 * 1280))
        e("s_branch L1_BPJ")
        e("L1_BPW:")
        e("s_lshl_b32 s42, s40, 1")
        e("s_mul_i32 s42, s42, 3072")
        e("s_mul_i32 s43, s41, 1536")
        e("s_add_u32 s42, s42, s43")
        e("v_add_u32 v153, -48, v1")
        e("v_min_u32 v153, v153, v1")
        e("v_cmp_lt_u32 vcc, 23, v153")
        e("v_mov_b32 v154, %d" % (3072 - 24 * 64))
        e("s_mov_b32 s65, 196608")
        e("s_mov_b32 s67, 0x5555")
        e("v_cndmask_b32 v152, 0, v154, vcc")
        e("v_lshl_add_u32 v152, v153, 6, v152")
        e("v_add_u32 v152, s42, v152")
        e("s_waitcnt lgkmcnt(0)")
        e("s_mov_b32 s8, s34")
        e("s_mov_b32 s9, s35")
        e("s_mov_b32 s10, %d" % (640 * 3072))
        e("s_branch L1_BPJ")
        e("L1_BPX:")
        e("s_lshr_b32 s40, s2, 5")
        e("s_and_b32 s41, s40, 1")
        e("s_lshl_b32 s41, s41, 10")
        e("s_lshl_b32 s42, s5, 2")
        e("s_add_u32 s41, s41, s42")
        e("s_lshr_b32 s40, s40, 1")
        e("s_add_u32 s41, s41, s40")
        e("s_mul_i32 s41, s41, 1280")
        e("v_bfe_u32 v152, v1, 1, 4")
        e("v_mul_u32_u24 v152, 0x14000, v152")
        e("v_and_b32 v153, 1, v1")
        e("v_lshl_add_u32 v152, v153, 6, v152")
        e("v_add_u32 v152, s41, v152")
        e("s_mov_b32 s65, 128")
        e("s_mov_b32 s67, 0")
        e("s_waitcnt lgkmcnt(0)")
        e("s_mov_b32 s8, s28")
        e("s_mov_b32 s9, s29")
        e("s_mov_b32 s10, %d" % (2048 * 1280))
        e("L1_BPJ:")
        e("s_mov_b32 s11, 0x00020000")
        for _ in range(NPF0):
            e(pf_one())
        stamp(e, opt, 3)
        if not opt.get("sw"):
            e("s_waitcnt vmcnt(%d)" % opt.get("pfw", NPF0 - 1))
            stamp(e, opt, 4)
            e("s_barrier")
    e("s_lshl_b32 s50, s4, 12")
    e("v_add_u32 v%d, s50, v4" % XB)
    e("v_add_u32 v%d, s50, v5" % (XB + 1))
    e("v_add_u32 v%d, %d, v4" % (HB, H_LDS))
    e("v_add_u32 v%d, %d, v5" % (HB + 1, H_LDS))
    e("v_mul_u32_u24 v6, 1280, v3")
    e("v_lshl_add_u32 v6, v2, 4, v6")
    e("s_lshl_b32 s40, s4, 2")
    e("v_add_u32 v%d, s40, v6" % UW)
    e("s_lshl_b32 s40, s4, 6")
    e("s_mov_b32 s41, 81920")
    for rr in range(3):
        e("s_add_u32 s42, s40, %d" % (rr * 256))
        e("v_add_u32 v6, s42, v1")
        e("v_lshlrev_b32 v%d, 4, v6" % (UR_ + rr))
        e("v_mul_u32_u24 v7, 3277, v6")
        e("v_lshrrev_b32 v7, 16, v7")
        e("v_mul_u32_u24 v8, 20, v7")
        e("v_sub_u32 v8, v6, v8")
        e("v_mul_lo_u32 v7, v7, s41")
        e("v_lshl_add_u32 v%d, v8, 4, v7" % (UG + rr))
    e("v_lshlrev_b32 v6, 8, v3")
    e("v_add_u32 v6, s7, v6")
    e("v_cvt_f32_u32 v6, v6")
    e("v_mul_f32 v6, 0x3a000000, v6")
    e("v_cvt_f32_u32 v7, v2")
    e("v_add_f32 v8, 0x41800000, v7")
    for tau in range(2):
        for j in range(8):
            cj = ((j & 3) + 16 * (j >> 2)) / 32.0
            import struct
            lit = struct.unpack("<I", struct.pack("<f", cj))[0]
            e("v_add_f32 v9, 0x%x, v6" % lit)
            e("v_mul_f32 v9, v9, v%d" % (7 + tau))
            e("v_cos_f32 v%d, v9" % (128 + j))
            e("v_sin_f32 v%d, v9" % (136 + j))
        e("s_nop 0")
        for k in range(4):
            e("v_cvt_pk_bf16_f32 v%d, v%d, v%d" % (TW + tau * 4 + k, 128 + 2 * k, 128 + 2 * k + 1))
            e("v_cvt_pk_bf16_f32 v%d, v%d, v%d" % (TW + 8 + tau * 4 + k, 136 + 2 * k, 136 + 2 * k + 1))
        for k in range(4):
            e("v_xor_b32 v%d, 0x80008000, v%d" % (TW + 16 + tau * 4 + k, TW + tau * 4 + k))
    for i in range(32):
        e("v_mov_b32 v%d, 0" % (ZA + i))
    e("s_waitcnt lgkmcnt(0)")
    stamp(e, opt, 2)
    srd(e, 24, 38, WS_END)

    def b_reads(c, ks, s):
        slot = c % 4
        r = []
        for mu in range(2):
            r.append("ds_read_b128 %s, v%d offset:%d" % (vr(bx(s, mu)), XB + ks, slot * 16384 + mu * 2048))
        for T in range(3):
            r.append("ds_read_b128 %s, v%d offset:%d" % (vr(bh(s, T)), HB + ks, slot * 6144 + T * 2048))
        return r

    def b_mfma(s):
        m = []
        for T in range(3):
            for mu in range(2):
                m.append("v_mfma_f32_16x16x32_bf16 %s, %s, %s, %s" % (vr(za(mu, T)), vr(bx(s, mu)), vr(bh(s, T)), vr(za(mu, T))))
        for mu in range(2):
            m.append("v_mfma_f32_16x16x32_bf16 %s, %s, %s, %s" % (vr(GA + 4 * mu), vr(bx(s, mu)), vr(bx(s, mu)), vr(GA + 4 * mu)))
        return m

    if PF and opt.get("sw"):
        for p in range(opt.get("np", 1)):
            e("s_waitcnt vmcnt(%d)" % (NPF0 - 1))
            if p == 0: stamp(e, opt, 4)
            e("s_barrier")
            e(pf_one())
        e("s_waitcnt vmcnt(%d)" % (NPF0 - 1))
    stamp(e, opt, 5)
    e("s_barrier")
    stamp(e, opt, 6)
    if PF:
        for _ in range(opt.get("npf1", 2)):
            if pfq: e(pf_one())
    if opt.get("pfonly"):
        while pfq:
            e("s_barrier")
            e(pf_one())
        e("s_endpgm")
    for r in b_reads(0, 0, 0):
        e(r)
    e("s_waitcnt lgkmcnt(0)")
    for c in range(NCH):
        for l in interleave(b_mfma(0), b_reads(c, 1, 1), per=2):
            e(l)
        e("s_waitcnt lgkmcnt(0)")
        if c < NCH - 1:
            if PF and opt.get("sw"):
                need = min(9, c + opt.get("swn", 3))
                e("s_waitcnt vmcnt(%d)" % max(0, (10 - len(pfq)) - 1 - need))
            e("s_barrier")
            oth = b_reads(c + 1, 0, 0)
            if PF and pfq:
                oth = [pf_one()] + oth
            for l in interleave(b_mfma(1), oth, per=2):
                e(l)
            e("s_waitcnt lgkmcnt(0)")
            if c == 3: stamp(e, opt, 7)
            if c == 6: stamp(e, opt, 8)
        else:
            for l in b_mfma(1):
                e(l)
    stamp(e, opt, 9)
    if opt.get("bprio", 1):
        e("s_setprio %d" % opt.get("bprio", 1))
    e("s_lshl_b32 s40, s4, 8")
    e("s_add_u32 s40, s40, %d" % ST_LDS)
    e("v_lshlrev_b32 v6, 2, v2")
    e("v_add_u32 v6, s40, v6")
    e("v_lshlrev_b32 v7, 4, v3")
    e("v_add_u32 v7, s40, v7")
    e("s_mov_b32 s58, 0xaaaaaaaa")
    e("s_mov_b32 s59, 0xaaaaaaaa")
    e("s_mov_b32 s60, 0xcccccccc")
    e("s_mov_b32 s61, 0xcccccccc")
    e("s_nop 2")
    for mu in range(2):
        g = GA + 4 * mu
        e("v_cndmask_b32_e64 v8, v%d, v%d, s[58:59]" % (g, g + 1))
        e("v_cndmask_b32_e64 v9, v%d, v%d, s[58:59]" % (g + 2, g + 3))
        e("v_cndmask_b32_e64 v%d, v8, v9, s[60:61]" % (10 + mu))
    e("s_mov_b32 exec_lo, 0x00f0000f")
    e("s_mov_b32 exec_hi, 0xf0000f00")
    for mu in range(2):
        e("ds_write_b32 v6, v%d offset:%d" % (10 + mu, 128 + mu * 64))
    e("s_mov_b32 exec_lo, 0x00100010")
    e("s_mov_b32 exec_hi, 0x00100010")
    for mu in range(2):
        e("ds_write_b128 v7, %s offset:%d" % (vr(za(mu, 2)), mu * 64))
    e("s_mov_b64 exec, -1")
    e("s_waitcnt lgkmcnt(0)")
    e("s_barrier")
    stamp(e, opt, 10)
    SUM = 48
    SQ = 56
    for mu in range(2):
        e("ds_read_b128 %s, v7 offset:%d" % (vr(SUM + 4 * mu), mu * 64))
        e("ds_read_b128 %s, v7 offset:%d" % (vr(SQ + 4 * mu), 128 + mu * 64))
    e("s_mov_b32 s40, 0x3acccccd")
    e("s_mov_b32 s41, 0x3727c5ac")
    e("s_waitcnt lgkmcnt(0)")
    for k in range(8):
        e("v_mul_f32 v%d, s40, v%d" % (SUM + k, SUM + k))
        e("v_mul_f32 v%d, s40, v%d" % (SQ + k, SQ + k))
        e("v_fma_f32 v%d, -v%d, v%d, v%d" % (SQ + k, SUM + k, SUM + k, SQ + k))
        e("v_add_f32 v%d, s41, v%d" % (SQ + k, SQ + k))
        e("v_rsq_f32 v%d, v%d" % (SQ + k, SQ + k))
    e("s_nop 0")
    ZF = 64
    for T in range(3):
        for mu in range(2):
            for hh in range(2):
                a = za(mu, T) + 2 * hh
                e("v_pk_mul_f32 %s, %s, %s" % (vr(a, 2), vr(a, 2), vr(SQ + 4 * mu + 2 * hh, 2)))
        for mu in range(2):
            for hh in range(2):
                a = za(mu, T) + 2 * hh
                e("v_cvt_pk_bf16_f32 v%d, v%d, v%d" % (ZF + 4 * T + 2 * mu + hh, a, a + 1))
    e("s_nop 1")
    def ur(t): return 16 + 4 * t
    def vv(t): return 24 + 4 * t
    def pp(t): return 32 + 4 * t
    def qq(t): return 40 + 4 * t
    def C(t): return TW + 4 * t
    def S(t): return TW + 8 + 4 * t
    def NC(t): return TW + 16 + 4 * t
    M = "v_mfma_f32_16x16x32_bf16 %s, %s, %s, %s"
    for t in range(2):
        e(M % (vr(ur(t)), vr(C(t)), vr(ZF), "0"))
        e(M % (vr(vv(t)), vr(S(t)), vr(ZF), "0"))
        e(M % (vr(pp(t)), vr(C(t)), vr(ZF + 8), "0"))
        e(M % (vr(qq(t)), vr(S(t)), vr(ZF + 8), "0"))
    for t in range(2):
        e(M % (vr(ur(t)), vr(S(t)), vr(ZF + 4), vr(ur(t))))
        e(M % (vr(vv(t)), vr(NC(t)), vr(ZF + 4), vr(vv(t))))
    e("s_mul_i32 s40, s5, 320")
    e("s_mul_i32 s41, s6, 20")
    e("s_add_u32 s40, s40, s41")
    e("s_lshl_b32 s40, s40, 4")
    e("s_add_u32 s40, s40, 0x%x" % WS_U)
    e("s_nop 4")
    OU = 128
    for t in range(2):
        for i in range(4):
            e("v_add_f32_dpp v%d, v%d, v%d row_shl:8 row_mask:0xf bank_mask:0xf bound_ctrl:0" % (48 + 8 * t + i, qq(t) + i, pp(t) + i))
            e("v_subrev_f32_dpp v%d, v%d, v%d row_shl:8 row_mask:0xf bank_mask:0xf bound_ctrl:0" % (52 + 8 * t + i, pp(t) + i, qq(t) + i))
    for t in range(2):
        for i in range(4):
            e("v_cvt_pk_bf16_f32 v%d, v%d, v%d" % (OU + 4 * t + i, ur(t) + i, vv(t) + i))
    for t in range(2):
        for i in range(4):
            e("ds_write_b32 v%d, v%d offset:%d" % (UW, OU + 4 * t + i, (16 * t + i) * 320))
    for t in range(2):
        for i in range(4):
            e("v_cvt_pk_bf16_f32 v%d, v%d, v%d" % (OU + 8 + 4 * t + i, 48 + 8 * t + i, 52 + 8 * t + i))
    e("s_mov_b32 exec_lo, 0x000f000f")
    e("s_mov_b32 exec_hi, 0x000f000f")
    for t in range(2):
        for i in range(4):
            e("ds_write_b32 v%d, v%d offset:%d" % (UW, OU + 8 + 4 * t + i, (16 * t + i) * 320 + 256))
    e("s_mov_b64 exec, -1")
    e("s_waitcnt lgkmcnt(0)")
    e("s_barrier")
    stamp(e, opt, 11)
    e("s_cmp_ge_u32 s4, 2")
    e("ds_read_b128 v[16:19], v%d" % UR_)
    e("ds_read_b128 v[20:23], v%d" % (UR_ + 1))
    e("s_cbranch_scc1 L1_B2")
    e("ds_read_b128 v[24:27], v%d" % (UR_ + 2))
    e("s_waitcnt lgkmcnt(0)")
    e("buffer_store_dwordx4 v[24:27], v%d, s[24:27], s40 offen%s" % (UG + 2, opt.get("ust", "")))
    e("L1_B2:")
    e("s_waitcnt lgkmcnt(0)")
    e("buffer_store_dwordx4 v[16:19], v%d, s[24:27], s40 offen%s" % (UG, opt.get("ust", "")))
    e("buffer_store_dwordx4 v[20:23], v%d, s[24:27], s40 offen%s" % (UG + 1, opt.get("ust", "")))
    stamp(e, opt, 12)
    prof_out(e, opt, 0, 12, 3, 24, vb=160)
    e("s_endpgm")

    e("L1_L:")
    if opt.get("lprio"):
        e("s_setprio %d" % opt["lprio"])
    VX = 112
    VW = 116
    VH = 119
    VH2 = 120
    VW2 = 125
    if opt.get("ls7"):
        e(opt["ls7"])
    e("v_lshrrev_b32 v6, 3, v1")
    e("v_and_b32 v7, 7, v1")
    e("v_xor_b32 v8, v7, v3")
    e("v_lshlrev_b32 v8, 4, v8")
    XS = opt.get("xs", 81920)
    e("s_mov_b32 s40, %d" % XS)
    e("v_mul_lo_u32 v9, v6, s40")
    e("v_add_u32 v9, v9, v8")
    e("s_mul_i32 s41, s7, %d" % opt.get("xr", 1280))
    for q in range(4):
        e("s_add_u32 s42, s41, %d" % (q * 8 * XS - q * 1024))
        if q % 2 == 0:
            e("v_add_u32 v%d, s42, v9" % (VX + q))
        else:
            e("v_xor_b32 v10, 64, v9")
            e("v_add_u32 v%d, s42, v10" % (VX + q))
    e("s_mul_i32 s41, s4, %d" % (16 * 3072))
    e("s_mul_i32 s42, s6, 192")
    e("s_add_u32 s41, s41, s42")
    for i in range(3):
        e("v_add_u32 v10, %d, v1" % (64 * i))
        e("v_mul_u32_u24 v11, 171, v10")
        e("v_lshrrev_b32 v11, 11, v11")
        e("v_mul_u32_u24 v12, 12, v11")
        e("v_sub_u32 v12, v10, v12")
        e("v_lshrrev_b32 v13, 3, v11")
        e("v_lshlrev_b32 v13, 1, v13")
        e("v_xor_b32 v12, v12, v13")
        e("v_mul_u32_u24 v11, 3072, v11")
        e("v_lshl_add_u32 v11, v12, 4, v11")
        e("s_sub_u32 s42, s41, %d" % (i * 1024))
        e("v_add_u32 v%d, s42, v11" % (VW + i))
    e("s_and_b32 s41, s4, 1")
    e("s_mul_i32 s42, s6, 20")
    e("s_lshl_b32 s43, s41, 3")
    e("s_add_u32 s43, s43, s42")
    e("v_add_u32 v10, s43, v6")
    e("v_mov_b32 v11, 320")
    e("v_cmp_eq_u32 vcc, 0, v10")
    e("s_lshl_b32 s43, s41, 6")
    e("v_xor_b32 v12, s43, v8")
    e("v_cndmask_b32 v10, v10, v11, vcc")
    e("v_mul_u32_u24 v10, 1280, v10")
    e("v_add_u32 v%d, v10, v12" % VH)
    e("s_add_u32 s43, s42, 16")
    e("v_add_u32 v10, s43, v6")
    e("v_and_b32 v10, 0x1ff, v10")
    e("s_cmp_eq_u32 s4, 1")
    e("s_cselect_b32 s43, 0, 1280")
    e("v_mul_lo_u32 v10, v10, s43")
    e("s_lshl_b32 s43, s4, 1")
    e("v_add_u32 v11, s43, v3")
    e("v_and_b32 v11, 7, v11")
    e("v_xor_b32 v11, v11, v7")
    e("v_lshl_add_u32 v%d, v11, 4, v10" % VH2)
    e("s_lshl_b32 s50, s4, 12")
    e("s_mul_i32 s51, s4, 3072")
    e("s_add_u32 s51, s51, %d" % W1_LDS)
    e("s_lshl_b32 s52, s4, 10")
    e("s_add_u32 s52, s52, %d" % H_LDS)
    e("s_lshl_b32 s53, s4, 9")
    e("s_add_u32 s53, s53, %d" % (H_LDS + 4096))
    stamp(e, opt, 13)
    e("s_waitcnt lgkmcnt(0)")
    stamp(e, opt, 2)
    srd(e, 8, 28, 2048 * 1280)
    srd(e, 12, 34, 640 * 3072)
    e("s_cmp_ge_u32 s4, 2")
    e("s_cselect_b32 s16, s32, s30")
    e("s_cselect_b32 s17, s33, s31")
    e("s_mov_b32 s18, %d" % (640 * 1280))
    e("s_mov_b32 s19, 0x00020000")
    srd(e, 20, 36, 1536 * 1280)
    srd(e, 24, 38, WS_END)

    if opt.get("rot3"):
        rot_calc(e, opt)
    elif opt.get("rot"):
        e(opt["rot"])
    else:
        e("s_mov_b32 s62, 0")
    def dma(c):
        slot = c % 4
        r = []
        pre = "s_add_u32 s63, s62, %d\ns_cmp_ge_u32 s63, 10\ns_cselect_b32 s54, 10, 0\ns_sub_u32 s63, s63, s54\ns_lshl_b32 s54, s63, 7\ns_mul_i32 s55, s63, 196608\n" % c
        r.append(pre + "s_add_u32 m0, s50, %d\ns_nop 0\nbuffer_load_dwordx4 v%d, s[8:11], s54 offen lds" % (slot * 16384, VX))
        for q in range(1, 4):
            r.append("buffer_load_dwordx4 v%d, s[8:11], s54 offen offset:%d lds" % (VX + q, q * 1024))
        r.append("s_add_u32 m0, s51, %d\ns_nop 0\nbuffer_load_dwordx4 v%d, s[12:15], s55 offen lds" % (slot * 12288, VW))
        for i in range(1, 3):
            r.append("buffer_load_dwordx4 v%d, s[12:15], s55 offen offset:%d lds" % (VW + i, i * 1024))
        r.append("s_add_u32 m0, s52, %d\ns_nop 0\nbuffer_load_dwordx4 v%d, s[16:19], s54 offen lds" % (slot * 6144, VH))
        r.append("s_add_u32 m0, s53, %d\ns_mov_b32 exec_hi, 0\nbuffer_load_dwordx4 v%d, s[16:19], s54 offen lds\ns_mov_b32 exec_hi, -1" % (slot * 6144, VH2))
        return r

    issued = []
    queue = []
    if opt.get("nch"):
        NCH = opt["nch"]
    skip = opt.get("skip", [])
    for c in range(NCH):
        for li, l in enumerate(dma(c)):
            if li in skip:
                l = "\n".join(x for x in l.split("\n") if not x.startswith("buffer_load"))
                if l: e_skip = l
                queue.append((c, -1 if c < 4 else c - 3, l + "\ns_nop 0", True))
                continue
            queue.append((c, -1 if c < 4 else c - 3, l, False))
    def take(pos, budget):
        out = []
        n = 0
        while queue and queue[0][1] <= pos and n < budget:
            c, _, t, sk = queue.pop(0)
            out.append(t)
            if not sk:
                issued.append(c)
                n += 1
        return out
    def allowed_after(c):
        last = max(i for i, t in enumerate(issued) if t <= c)
        return len(issued) - 1 - last
    SPF = opt.get("spf", 0)
    spfq = list(range(10))
    def spf_one():
        spfq.pop(0)
        r = []
        for jj in range(4):
            r.append("s_buffer_load_dword s31, s[8:11], s28 offset:%d" % (jj * 81920))
        for t in range(6):
            r.append("s_buffer_load_dword s31, s[12:15], s29 offset:%d" % (t * 128))
            if opt.get("s64"):
                r.append("s_buffer_load_dword s31, s[12:15], s29 offset:%d" % (t * 128 + 64))
        for t in range(3):
            r.append("s_buffer_load_dword s31, s[16:19], s30 offset:%d" % (t * 1280))
        if opt.get("s64"):
            for jj in range(4):
                r.append("s_buffer_load_dword s31, s[8:11], s28 offset:%d" % (jj * 81920 + 64))
            for t in range(3):
                r.append("s_buffer_load_dword s31, s[16:19], s30 offset:%d" % (t * 1280 + 64))
        r.append("s_add_u32 s28, s28, 128\ns_add_u32 s29, s29, 196608\ns_add_u32 s30, s30, 128")
        return r
    if SPF:
        e("s_lshr_b32 s40, s2, 5")
        e("s_and_b32 s41, s40, 1")
        e("s_lshl_b32 s41, s41, 4")
        e("s_lshl_b32 s42, s4, 2")
        e("s_add_u32 s41, s41, s42")
        e("s_lshl_b32 s41, s41, 6")
        e("s_lshl_b32 s42, s5, 2")
        e("s_add_u32 s41, s41, s42")
        e("s_lshr_b32 s40, s40, 1")
        e("s_add_u32 s41, s41, s40")
        e("s_mul_i32 s28, s41, 1280")
        e("s_lshr_b32 s40, s2, 3")
        e("s_lshl_b32 s41, s40, 1")
        e("s_lshr_b32 s42, s4, 1")
        e("s_add_u32 s41, s41, s42")
        e("s_mul_i32 s41, s41, 3072")
        e("s_and_b32 s42, s2, 1")
        e("s_mul_i32 s43, s42, 1536")
        e("s_add_u32 s41, s41, s43")
        e("s_and_b32 s43, s4, 1")
        e("s_mul_i32 s29, s43, 768")
        e("s_add_u32 s29, s29, s41")
        e("s_mul_i32 s42, s42, 160")
        e("s_mul_i32 s40, s40, 5")
        e("s_add_u32 s42, s42, s40")
        e("s_mul_i32 s43, s43, 3")
        e("s_add_u32 s42, s42, s43")
        e("s_mul_i32 s30, s42, 1280")
        for _ in range(SPF):
            for l in spf_one():
                e(l)
        e("s_waitcnt lgkmcnt(0)")
        stamp(e, opt, 13)
        if opt.get("spb"):
            e("s_barrier")
    if PF:
        e("s_barrier")
    for l in take(-1, 9):
        e(l)
    stamp(e, opt, 3)
    if PF:
        for _ in range(opt.get("np", 1) - 1):
            e("s_barrier")
            for l in take(-1, 9):
                e(l)
    for l in take(-1, opt.get("lpre", 18) - 9 * (opt.get("np", 1) if PF else 1)):
        e(l)
    stamp(e, opt, 4)
    e("s_cmp_ge_u32 s2, 240")
    e("s_cselect_b32 s43, 240, 0")
    e("s_sub_u32 s43, s2, s43")
    e("s_mul_i32 s47, s43, 1366")
    e("s_lshr_b32 s47, s47, 16")
    e("s_mul_i32 s48, s47, 48")
    e("s_sub_u32 s48, s43, s48")
    e("v_lshrrev_b32 v10, 2, v1")
    e("v_mul_u32_u24 v10, 1280, v10")
    e("v_and_b32 v11, 3, v1")
    e("v_lshl_add_u32 v10, v11, 4, v10")
    e("s_mul_i32 s43, s48, %d" % (32 * 1280))
    e("s_lshl_b32 s49, s47, 8")
    e("s_add_u32 s43, s43, s49")
    e("s_lshl_b32 s49, s4, 6")
    e("s_add_u32 s43, s43, s49")
    e("v_add_u32 v%d, s43, v10" % VW2)
    e("s_lshl_b32 s56, s4, 11")
    e("s_add_u32 s56, s56, %d" % W2S_LDS)
    e("s_mov_b32 s57, %d" % (16 * 1280 - 1024))
    e("v_lshrrev_b32 v8, 2, v2")
    e("v_lshl_add_u32 v8, v3, 2, v8")
    e("v_lshlrev_b32 v8, 6, v8")
    e("v_and_b32 v9, 3, v2")
    e("v_lshl_add_u32 v8, v9, 3, v8")
    e("v_add_u32 v8, s56, v8")
    e("v_lshlrev_b32 v9, 4, v1")
    e("s_lshl_b32 s40, s47, 3")
    e("s_lshl_b32 s41, s4, 1")
    e("s_add_u32 s40, s40, s41")
    e("s_mul_i32 s40, s40, 48")
    e("s_add_u32 s40, s40, s48")
    e("s_lshl_b32 s40, s40, 10")
    e("s_add_u32 s40, s40, 0x%x" % WS_W2T)
    e("s_add_u32 s41, s40, %d" % (48 * 1024))
    stamp(e, opt, 5)
    e("s_waitcnt vmcnt(%d)" % allowed_after(0))
    e("s_barrier")
    stamp(e, opt, 6)
    W2F = 128
    w2pos = opt.get("w2pos", NCH - 3)
    for c in range(NCH - 1):
        for l in take(c, opt.get("lb0", 9) if c == 0 else opt.get("lb", 12)):
            e(l)
        if SPF and spfq:
            for l in spf_one():
                e(l)
        if c == w2pos:
            assert not queue
            e("s_mov_b32 m0, s56")
            e("s_nop 0")
            e("buffer_load_dwordx4 v%d, s[20:23], 0 offen lds" % VW2)
            e("buffer_load_dwordx4 v%d, s[20:23], s57 offen offset:1024 lds" % VW2)
            issued.extend([99, 99])
        e("s_waitcnt vmcnt(%d)" % allowed_after(c + 1))
        e("s_barrier")
        if c == 0: stamp(e, opt, 10)
        if c == 1: stamp(e, opt, 12)
        if c == (3 if NCH == 10 else 9): stamp(e, opt, 7)
        if c == (6 if NCH == 10 else 14): stamp(e, opt, 8)
    assert not queue
    stamp(e, opt, 9)
    e("s_waitcnt vmcnt(0)")
    for t in range(2):
        for hh in range(2):
            e("ds_read_b64_tr_b16 %s, v8 offset:%d" % (vr(W2F + 4 * t + 2 * hh, 2), hh * 1024 + t * 32))
    e("s_waitcnt lgkmcnt(0)")
    e("buffer_store_dwordx4 %s, v9, s[24:27], s40 offen%s" % (vr(W2F), opt.get("wst", "")))
    e("buffer_store_dwordx4 %s, v9, s[24:27], s41 offen%s" % (vr(W2F + 4), opt.get("wst", "")))
    stamp(e, opt, 11)
    prof_out(e, opt, 0, 12, 3, 24, vb=160)
    e("L1_END:")
    e("s_endpgm")
    return e.text()


HEAD = """; Kernarg layout for this problem (88 bytes, ptrs only, base s[0:1]):
"""


def kernel_wrap(name, body, vgpr=256, sgpr=102, accum=None):
    accum = accum or vgpr
    txt = ".globl %s\n.p2align 8\n.type %s,@function\n%s:\n%s" % (name, name, name, body)
    desc = """.p2align 6
.amdhsa_kernel %s
  .amdhsa_next_free_vgpr %d
  .amdhsa_next_free_sgpr %d
  .amdhsa_accum_offset %d
  .amdhsa_group_segment_fixed_size 0
  .amdhsa_kernarg_size 88
  .amdhsa_user_sgpr_count 2
  .amdhsa_user_sgpr_kernarg_segment_ptr 1
  .amdhsa_system_sgpr_workgroup_id_x 1
.end_amdhsa_kernel
""" % (name, vgpr, sgpr, accum)
    return txt, desc


DEF = {"hst": " sc1", "wst": " sc1", "ust": " sc1", "pre2": 2, "hb2": 5, "yb2": 4, "xc2": 9}


def build(opt=None, only_l1=False):
    global PROF_ON
    o = dict(DEF)
    o.update(opt or {})
    opt = o
    PROF_ON = bool(opt.get("prof"))
    k1 = KN + "_kernel"
    k2 = "fnet_l2_kernel"
    launches = ["; @launch kernel=%s grid=(256,1,1) block=(768,1,1) lds=%d" % (k1, L1_LDS)]
    t1, d1 = kernel_wrap(k1, gen_l1(opt), vgpr=168)
    txt = [t1]
    desc = [d1]
    if not only_l1:
        from gen2 import gen_l2, L2_LDS, L2_BLOCK, L2_VGPR, L2_ACC
        launches.append("; @launch kernel=%s grid=(256,1,1) block=(%d,1,1) lds=%d" % (k2, L2_BLOCK, L2_LDS))
        t2, d2 = kernel_wrap(k2, gen_l2(opt), vgpr=L2_VGPR, accum=L2_ACC)
        txt.append(t2)
        desc.append(d2)
    s = HEAD + "\n".join(launches) + "\n.amdgcn_target \"amdgcn-amd-amdhsa--gfx950\"\n.text\n" + "\n".join(txt)
    s += ".section .rodata,\"a\"\n" + "".join(desc)
    return s


if __name__ == "__main__":
    only = len(sys.argv) > 1 and sys.argv[1] == "l1"
    s = build({}, only_l1=only)
    out = "cdna_kernels/%s.s" % KN if not only else "l1.s"
    open(out, "w").write(s)
    print("wrote", out, len(s))
```

```python
import sys
KN = "recurrent_scan__spectral_fnet__dense_activation_silu__prompt"

WS_H = 0
WS_U = 0x600000
WS_W2T = 0x880000
WS_END = 0xA60000


PROF_ON = False


class E:
    def __init__(self):
        self.L = []

    def __call__(self, s):
        for x in s.split("\n"):
            x = x.strip()
            if x:
                self.L.append(x)

    def text(self):
        return "\n".join(("" if l.endswith(":") else "  ") + l for l in self.L) + "\n"


def vr(b, n=4):
    return "v[%d:%d]" % (b, b + n - 1)


def srd(e, d, lo, nbytes):
    if nbytes == WS_END and PROF_ON:
        nbytes = 0x1000000
    e("s_mov_b32 s%d, s%d" % (d, lo))
    e("s_mov_b32 s%d, s%d" % (d + 1, lo + 1))
    e("s_mov_b32 s%d, 0x%x" % (d + 2, nbytes))
    e("s_mov_b32 s%d, 0x00020000" % (d + 3))


PROF_BASE = 0xB00000


def stamp(e, opt, i, real=False):
    if opt.get("prof"):
        e("%s s[%d:%d]" % ("s_memrealtime" if real else "s_memtime", 70 + 2 * i, 71 + 2 * i))


def prof_out(e, opt, kern, nwaves, wave_sreg, srd0, n=16, vb=240):
    if not opt.get("prof"):
        return
    e("s_mov_b64 exec, -1")
    e("s_waitcnt vmcnt(0)")
    stamp(e, opt, n - 2)
    stamp(e, opt, n - 1, real=True)
    e("s_waitcnt lgkmcnt(0)")
    e("s_mul_i32 s68, s2, %d" % nwaves)
    e("s_add_u32 s68, s68, s%d" % wave_sreg)
    e("s_lshl_b32 s68, s68, 6")
    e("s_add_u32 s68, s68, 0x%x" % (PROF_BASE + kern * 0x40000))
    e("v_mov_b32 v%d, 0" % (vb + 4))
    for i in range(n):
        e("v_mov_b32 v%d, s%d" % (vb + (i % 4), 70 + 2 * i))
        if i % 4 == 3:
            e("s_mov_b64 exec, 1")
            e("buffer_store_dwordx4 v[%d:%d], v%d, s[%d:%d], s68 offen offset:%d" % (vb, vb + 3, vb + 4, srd0, srd0 + 3, (i // 4) * 16))
            e("s_waitcnt vmcnt(0)")
            e("s_mov_b64 exec, -1")


def interleave(mf, other, per=2, start=0):
    out = []
    o = list(other)
    for i, m in enumerate(mf):
        out.append(m)
        if i >= start:
            for _ in range(per):
                if o:
                    out.append(o.pop(0))
    out += o
    return out


X_LDS = 0
W1_LDS = 65536
H_LDS = 114688
W2S_LDS = 139264
ST_LDS = 147456
CS_LDS = 148480
L1_LDS = 148864


def rot_calc(e, opt):
    a, b, q, p = opt["rot3"]
    e("s_lshr_b32 s40, s2, 5")
    e("s_mul_i32 s40, s40, %d" % a)
    e("s_lshr_b32 s41, s2, 3")
    e("s_and_b32 s41, s41, 3")
    e("s_mul_i32 s41, s41, %d" % b)
    e("s_add_u32 s40, s40, s41")
    e("s_lshr_b32 s41, s2, 1")
    e("s_and_b32 s41, s41, 3")
    e("s_mul_i32 s41, s41, %d" % q)
    e("s_add_u32 s40, s40, s41")
    e("s_and_b32 s41, s2, 1")
    e("s_mul_i32 s41, s41, %d" % p)
    e("s_add_u32 s40, s40, s41")
    e("s_mul_i32 s41, s40, 205")
    e("s_lshr_b32 s41, s41, 11")
    e("s_mul_i32 s41, s41, 10")
    e("s_sub_u32 s62, s40, s41")


def gen_l1(opt):
    e = E()
    NCH = 10
    e("s_cmp_ge_u32 s2, 256")
    e("s_cbranch_scc1 L1_END")
    stamp(e, opt, 0, real=True)
    stamp(e, opt, 1)
    e("s_load_dwordx2 s[28:29], s[0:1], 0")
    e("s_load_dwordx2 s[30:31], s[0:1], 24")
    e("s_load_dwordx2 s[32:33], s[0:1], 32")
    e("s_load_dwordx2 s[34:35], s[0:1], 48")
    e("s_load_dwordx2 s[36:37], s[0:1], 56")
    e("s_load_dwordx2 s[38:39], s[0:1], 80")
    e("v_lshrrev_b32 v2, 6, v0")
    e("v_and_b32 v1, 63, v0")
    e("v_readfirstlane_b32 s3, v2")
    e("s_and_b32 s40, s2, 7")
    e("s_lshr_b32 s41, s2, 3")
    if opt.get("rbm"):
        e("s_and_b32 s5, s40, 6")
        e("s_and_b32 s42, s41, 1")
        e("s_add_u32 s5, s5, s42")
        e("s_and_b32 s42, s41, 2")
        e("s_lshl_b32 s42, s42, 2")
        e("s_add_u32 s5, s5, s42")
    else:
        e("s_lshr_b32 s5, s40, 1")
        e("s_lshl_b32 s5, s5, 2")
        e("s_and_b32 s42, s41, 3")
        e("s_add_u32 s5, s5, s42")
    e("s_and_b32 s6, s40, 1")
    e("s_lshl_b32 s6, s6, 3")
    e("s_lshr_b32 s42, s41, 2")
    e("s_add_u32 s6, s6, s42")
    e("s_and_b32 s4, s3, 3")
    e("s_lshl_b32 s7, s5, 2")
    e("s_add_u32 s7, s7, s4")
    e("v_and_b32 v2, 15, v1")
    e("v_lshrrev_b32 v3, 4, v1")
    e("v_lshrrev_b32 v6, 1, v2")
    e("v_xor_b32 v6, v6, v3")
    e("v_lshlrev_b32 v6, 4, v6")
    e("v_lshl_add_u32 v4, v2, 7, v6")
    e("v_xor_b32 v5, 64, v4")
    if opt.get("lonly"):
        e("s_cmp_lt_u32 s3, 8")
        e("s_cbranch_scc1 L1_END")
    e("s_cmp_ge_u32 s3, 4")
    e("s_cbranch_scc1 L1_B")

    ACC = 16
    CSA = 64
    FR = [72, 104]
    ONES = 136
    XA = 140
    WA = 142
    def acc(mu, p, u): return ACC + ((mu * 3 + p) * 2 + u) * 4
    def fx(s, mu): return FR[s] + mu * 4
    def fw(s, p, u): return FR[s] + 8 + (p * 2 + u) * 4
    e("s_cmp_eq_u32 s4, 3")
    e("s_cselect_b32 s8, 0, s4")
    e("s_lshl_b32 s40, s4, 12")
    e("v_add_u32 v%d, s40, v4" % XA)
    e("v_add_u32 v%d, s40, v5" % (XA + 1))
    e("v_lshrrev_b32 v6, 2, v2")
    e("v_lshl_add_u32 v6, v3, 3, v6")
    e("v_mul_u32_u24 v6, 192, v6")
    e("v_and_b32 v7, 1, v2")
    e("v_lshl_add_u32 v6, v7, 3, v6")
    e("v_lshrrev_b32 v7, 1, v2")
    e("v_and_b32 v7, 1, v7")
    e("v_and_b32 v8, 1, v3")
    e("v_lshlrev_b32 v8, 1, v8")
    e("v_xor_b32 v7, v7, v8")
    e("v_lshl_add_u32 v6, v7, 4, v6")
    e("v_xor_b32 v7, 32, v6")
    for p in range(3):
        e("s_add_u32 s40, s8, %d" % p)
        e("s_cmp_ge_u32 s40, 3")
        e("s_cselect_b32 s41, 3, 0")
        e("s_sub_u32 s40, s40, s41")
        e("s_mov_b32 s%d, s40" % (44 + p))
        e("s_lshl_b32 s40, s40, 6")
        e("s_add_u32 s40, s40, %d" % W1_LDS)
        e("v_add_u32 v%d, s40, v6" % (WA + 2 * p))
        e("v_add_u32 v%d, s40, v7" % (WA + 2 * p + 1))
    for i in range(48 + 8):
        e("v_mov_b32 v%d, 0" % (ACC + i))
    for i in range(4):
        e("v_mov_b32 v%d, 0x3f803f80" % (ONES + i))

    def a_reads(c, ks, s):
        slot = c % 4
        r = []
        for mu in range(2):
            r.append("ds_read_b128 %s, v%d offset:%d" % (vr(fx(s, mu)), XA + ks, slot * 16384 + mu * 2048))
        for p in range(3):
            for u in range(2):
                for h in range(2):
                    r.append("ds_read_b64_tr_b16 %s, v%d offset:%d" % (vr(fw(s, p, u) + 2 * h, 2), WA + 2 * p + u, slot * 12288 + ks * 6144 + h * 768))
        return r

    def a_mfma(s):
        m = []
        for p in range(3):
            for u in range(2):
                for mu in range(2):
                    m.append("v_mfma_f32_16x16x32_bf16 %s, %s, %s, %s" % (vr(acc(mu, p, u)), vr(fw(s, p, u)), vr(fx(s, mu)), vr(acc(mu, p, u))))
                if p == 0:
                    m.append("v_mfma_f32_16x16x32_bf16 %s, %s, %s, %s" % (vr(CSA + 4 * u), vr(fw(s, 0, u)), vr(ONES), vr(CSA + 4 * u)))
        return m

    PF = opt.get("pf", 1)
    if PF:
        for _ in range(opt.get("np", 1)):
            e("s_barrier")
    stamp(e, opt, 5)
    e("s_barrier")
    if opt.get("pfonly"):
        e("s_endpgm")
    stamp(e, opt, 6)
    for r in a_reads(0, 0, 0):
        e(r)
    e("s_waitcnt lgkmcnt(0)")
    for c in range(NCH):
        for l in interleave(a_mfma(0), a_reads(c, 1, 1), per=2):
            e(l)
        e("s_waitcnt lgkmcnt(0)")
        if c < NCH - 1:
            e("s_barrier")
            for l in interleave(a_mfma(1), a_reads(c + 1, 0, 0), per=2):
                e(l)
            e("s_waitcnt lgkmcnt(0)")
            if c == 3: stamp(e, opt, 7)
            if c == 6: stamp(e, opt, 8)
        else:
            for l in a_mfma(1):
                e(l)
    stamp(e, opt, 9)
    T = 148
    e("v_lshlrev_b32 v6, 4, v3")
    e("s_lshl_b32 s40, s8, 7")
    e("s_add_u32 s40, s40, %d" % CS_LDS)
    e("v_add_u32 v7, s40, v6")
    e("s_lshl_b32 s40, s4, 8")
    e("s_add_u32 s40, s40, %d" % ST_LDS)
    e("v_lshlrev_b32 v8, 2, v2")
    e("v_add_u32 v8, s40, v8")
    for p in range(3):
        e("s_lshl_b32 s40, s%d, 7" % (44 + p))
        e("s_add_u32 s40, s40, %d" % CS_LDS)
        e("v_add_u32 v%d, s40, v6" % (9 + p))
    e("v_lshlrev_b32 v12, 4, v1")
    e("s_mov_b32 exec_lo, 0x00010001")
    e("s_mov_b32 exec_hi, 0x00010001")
    e("s_nop 4")
    e("ds_write_b128 v7, %s" % vr(CSA))
    e("ds_write_b128 v7, %s offset:64" % vr(CSA + 4))
    e("s_mov_b64 exec, -1")
    srd(e, 24, 38, WS_END)
    e("s_waitcnt lgkmcnt(0)")
    e("s_barrier")
    stamp(e, opt, 10)
    for mu in range(2):
        e("ds_read_b32 v%d, v8 offset:%d" % (72 + 2 * mu, mu * 64))
        e("ds_read_b32 v%d, v8 offset:%d" % (76 + 2 * mu, 128 + mu * 64))
    CSR = 80
    for p in range(3):
        for u in range(2):
            e("ds_read_b128 %s, v%d offset:%d" % (vr(CSR + (p * 2 + u) * 4), 9 + p, u * 64))
    e("s_mov_b32 s40, 0x3acccccd")
    e("s_mov_b32 s41, 0x3727c5ac")
    e("s_mov_b32 s42, 0xbfb8aa3b")
    e("v_mov_b32 v104, 1.0")
    e("v_mov_b32 v105, 1.0")
    e("s_waitcnt lgkmcnt(6)")
    for mu in range(2):
        m, q = 72 + 2 * mu, 76 + 2 * mu
        e("v_mul_f32 v%d, s40, v%d" % (m, m))
        e("v_mul_f32 v%d, s40, v%d" % (q, q))
        e("v_fma_f32 v%d, -v%d, v%d, v%d" % (q, m, m, q))
        e("v_add_f32 v%d, s41, v%d" % (q, q))
        e("v_rsq_f32 v%d, v%d" % (q, q))
    e("s_nop 0")
    for mu in range(2):
        q = 76 + 2 * mu
        e("v_mul_f32 v%d, s42, v%d" % (106 + 2 * mu, q))
    e("s_waitcnt lgkmcnt(0)")
    e("s_mul_i32 s40, s7, 96")
    e("s_mul_i32 s41, s6, 3")
    e("s_add_u32 s40, s40, s41")
    TT = 112
    ZZ = 120
    OUT = 128
    n = 0
    for mu in range(2):
        m, r_, rn = 72 + 2 * mu, 76 + 2 * mu, 106 + 2 * mu
        for p in range(3):
            for u in range(2):
                for hh in range(2):
                    a = acc(mu, p, u) + 2 * hh
                    cs = CSR + (p * 2 + u) * 4 + 2 * hh
                    t = TT + u * 4 + hh * 2
                    e("v_pk_fma_f32 %s, %s, %s, %s op_sel_hi:[1,0,1] neg_lo:[0,1,0] neg_hi:[0,1,0]" % (vr(t, 2), vr(cs, 2), vr(m, 2), vr(a, 2)))
            for k in range(4):
                e("v_pk_mul_f32 %s, %s, %s op_sel_hi:[1,0]" % (vr(ZZ + 2 * k, 2), vr(TT + 2 * k, 2), vr(rn, 2)))
            for k in range(8):
                e("v_exp_f32 v%d, v%d" % (ZZ + k, ZZ + k))
            for k in range(4):
                e("v_pk_mul_f32 %s, %s, %s op_sel_hi:[1,0]" % (vr(TT + 2 * k, 2), vr(TT + 2 * k, 2), vr(r_, 2)))
            for k in range(4):
                e("v_pk_add_f32 %s, %s, v[104:105]" % (vr(ZZ + 2 * k, 2), vr(ZZ + 2 * k, 2)))
            for k in range(8):
                e("v_rcp_f32 v%d, v%d" % (ZZ + k, ZZ + k))
            e("s_add_u32 s41, s40, s%d" % (44 + p))
            e("s_add_u32 s41, s41, %d" % (mu * 48))
            e("s_lshl_b32 s41, s41, 10")
            for k in range(4):
                e("v_pk_mul_f32 %s, %s, %s" % (vr(TT + 2 * k, 2), vr(TT + 2 * k, 2), vr(ZZ + 2 * k, 2)))
            o = OUT + 4 * n
            for k in range(4):
                e("v_cvt_pk_bf16_f32 v%d, v%d, v%d" % (o + k, TT + 2 * k, TT + 2 * k + 1))
            e("buffer_store_dwordx4 %s, v12, s[24:27], s41 offen%s" % (vr(o), opt.get("hst", "")))
            n += 1
            if n == opt.get("be2", 4):
                e("s_barrier")
    stamp(e, opt, 11)
    prof_out(e, opt, 0, 12, 3, 24, vb=160)
    e("s_endpgm")

    e("L1_B:")
    e("s_cmp_ge_u32 s3, 8")
    e("s_cbranch_scc1 L1_L")
    ZA = 16
    GA = 40
    FB = [48, 68]
    TW = 88
    XB = 121
    HB = 123
    UW = 125
    UR_ = 112
    UG = 115
    def za(mu, T): return ZA + (mu * 3 + T) * 4
    def bx(s, mu): return FB[s] + mu * 4
    def bh(s, T): return FB[s] + 8 + T * 4
    NPF0 = opt.get("npf0", 3)
    pfq = list(range(10))
    def pf_one():
        pfq.pop(0)
        t = "s_mul_i32 s64, s62, s65\n"
        if opt.get("pfm"):
            t += "s_mov_b64 exec, s[66:67]\nbuffer_load_dword v153, v152, s[8:11], s64 offen\ns_mov_b64 exec, -1\n"
        else:
            t += "buffer_load_dword v153, v152, s[8:11], s64 offen\n"
        t += "s_add_u32 s62, s62, 1\ns_cmp_eq_u32 s62, 10\ns_cselect_b32 s62, 0, s62"
        return t
    if PF:
        if opt.get("rot3"):
            rot_calc(e, opt)
        else:
            e("s_mov_b32 s62, 0")
        e("s_lshr_b32 s40, s2, 3")
        e("s_and_b32 s41, s2, 1")
        e("s_mov_b32 s64, 0")
        e("s_mov_b32 s66, 0x55555555")
        e("s_mov_b32 s67, 0x55555555")
        e("s_cmp_eq_u32 s4, 0")
        e("s_cbranch_scc1 L1_BPX")
        e("s_cmp_eq_u32 s4, 1")
        e("s_cbranch_scc1 L1_BPW")
        e("s_mul_i32 s42, s41, 160")
        e("s_mul_i32 s43, s40, 5")
        e("s_add_u32 s42, s42, s43")
        e("s_mul_i32 s42, s42, 1280")
        e("v_lshrrev_b32 v152, 1, v1")
        e("v_min_u32 v152, 4, v152")
        e("v_mul_u32_u24 v152, 1280, v152")
        e("v_and_b32 v153, 1, v1")
        e("v_lshl_add_u32 v152, v153, 6, v152")
        e("v_add_u32 v152, s42, v152")
        e("s_mov_b32 s65, 128")
        e("s_mov_b32 s66, 0x155")
        e("s_mov_b32 s67, 0")
        e("s_waitcnt lgkmcnt(0)")
        e("s_cmp_eq_u32 s4, 2")
        e("s_cselect_b32 s8, s30, s32")
        e("s_cselect_b32 s9, s31, s33")
        e("s_mov_b32 s10, %d" % (640 * 1280))
        e("s_branch L1_BPJ")
        e("L1_BPW:")
        e("s_lshl_b32 s42, s40, 1")
        e("s_mul_i32 s42, s42, 3072")
        e("s_mul_i32 s43, s41, 1536")
        e("s_add_u32 s42, s42, s43")
        e("v_add_u32 v153, -48, v1")
        e("v_min_u32 v153, v153, v1")
        e("v_cmp_lt_u32 vcc, 23, v153")
        e("v_mov_b32 v154, %d" % (3072 - 24 * 64))
        e("s_mov_b32 s65, 196608")
        e("s_mov_b32 s67, 0x5555")
        e("v_cndmask_b32 v152, 0, v154, vcc")
        e("v_lshl_add_u32 v152, v153, 6, v152")
        e("v_add_u32 v152, s42, v152")
        e("s_waitcnt lgkmcnt(0)")
        e("s_mov_b32 s8, s34")
        e("s_mov_b32 s9, s35")
        e("s_mov_b32 s10, %d" % (640 * 3072))
        e("s_branch L1_BPJ")
        e("L1_BPX:")
        e("s_lshr_b32 s40, s2, 5")
        e("s_and_b32 s41, s40, 1")
        e("s_lshl_b32 s41, s41, 10")
        e("s_lshl_b32 s42, s5, 2")
        e("s_add_u32 s41, s41, s42")
        e("s_lshr_b32 s40, s40, 1")
        e("s_add_u32 s41, s41, s40")
        e("s_mul_i32 s41, s41, 1280")
        e("v_bfe_u32 v152, v1, 1, 4")
        e("v_mul_u32_u24 v152, 0x14000, v152")
        e("v_and_b32 v153, 1, v1")
        e("v_lshl_add_u32 v152, v153, 6, v152")
        e("v_add_u32 v152, s41, v152")
        e("s_mov_b32 s65, 128")
        e("s_mov_b32 s67, 0")
        e("s_waitcnt lgkmcnt(0)")
        e("s_mov_b32 s8, s28")
        e("s_mov_b32 s9, s29")
        e("s_mov_b32 s10, %d" % (2048 * 1280))
        e("L1_BPJ:")
        e("s_mov_b32 s11, 0x00020000")
        for _ in range(NPF0):
            e(pf_one())
        stamp(e, opt, 3)
        if not opt.get("sw"):
            e("s_waitcnt vmcnt(%d)" % opt.get("pfw", NPF0 - 1))
            stamp(e, opt, 4)
            e("s_barrier")
    e("s_lshl_b32 s50, s4, 12")
    e("v_add_u32 v%d, s50, v4" % XB)
    e("v_add_u32 v%d, s50, v5" % (XB + 1))
    e("v_add_u32 v%d, %d, v4" % (HB, H_LDS))
    e("v_add_u32 v%d, %d, v5" % (HB + 1, H_LDS))
    e("v_mul_u32_u24 v6, 1280, v3")
    e("v_lshl_add_u32 v6, v2, 4, v6")
    e("s_lshl_b32 s40, s4, 2")
    e("v_add_u32 v%d, s40, v6" % UW)
    e("s_lshl_b32 s40, s4, 6")
    e("s_mov_b32 s41, 81920")
    for rr in range(3):
        e("s_add_u32 s42, s40, %d" % (rr * 256))
        e("v_add_u32 v6, s42, v1")
        e("v_lshlrev_b32 v%d, 4, v6" % (UR_ + rr))
        e("v_mul_u32_u24 v7, 3277, v6")
        e("v_lshrrev_b32 v7, 16, v7")
        e("v_mul_u32_u24 v8, 20, v7")
        e("v_sub_u32 v8, v6, v8")
        e("v_mul_lo_u32 v7, v7, s41")
        e("v_lshl_add_u32 v%d, v8, 4, v7" % (UG + rr))
    e("v_lshlrev_b32 v6, 8, v3")
    e("v_add_u32 v6, s7, v6")
    e("v_cvt_f32_u32 v6, v6")
    e("v_mul_f32 v6, 0x3a000000, v6")
    e("v_cvt_f32_u32 v7, v2")
    e("v_add_f32 v8, 0x41800000, v7")
    for tau in range(2):
        for j in range(8):
            cj = ((j & 3) + 16 * (j >> 2)) / 32.0
            import struct
            lit = struct.unpack("<I", struct.pack("<f", cj))[0]
            e("v_add_f32 v9, 0x%x, v6" % lit)
            e("v_mul_f32 v9, v9, v%d" % (7 + tau))
            e("v_cos_f32 v%d, v9" % (128 + j))
            e("v_sin_f32 v%d, v9" % (136 + j))
        e("s_nop 0")
        for k in range(4):
            e("v_cvt_pk_bf16_f32 v%d, v%d, v%d" % (TW + tau * 4 + k, 128 + 2 * k, 128 + 2 * k + 1))
            e("v_cvt_pk_bf16_f32 v%d, v%d, v%d" % (TW + 8 + tau * 4 + k, 136 + 2 * k, 136 + 2 * k + 1))
        for k in range(4):
            e("v_xor_b32 v%d, 0x80008000, v%d" % (TW + 16 + tau * 4 + k, TW + tau * 4 + k))
    for i in range(32):
        e("v_mov_b32 v%d, 0" % (ZA + i))
    e("s_waitcnt lgkmcnt(0)")
    stamp(e, opt, 2)
    srd(e, 24, 38, WS_END)

    def b_reads(c, ks, s):
        slot = c % 4
        r = []
        for mu in range(2):
            r.append("ds_read_b128 %s, v%d offset:%d" % (vr(bx(s, mu)), XB + ks, slot * 16384 + mu * 2048))
        for T in range(3):
            r.append("ds_read_b128 %s, v%d offset:%d" % (vr(bh(s, T)), HB + ks, slot * 6144 + T * 2048))
        return r

    def b_mfma(s):
        m = []
        for T in range(3):
            for mu in range(2):
                m.append("v_mfma_f32_16x16x32_bf16 %s, %s, %s, %s" % (vr(za(mu, T)), vr(bx(s, mu)), vr(bh(s, T)), vr(za(mu, T))))
        for mu in range(2):
            m.append("v_mfma_f32_16x16x32_bf16 %s, %s, %s, %s" % (vr(GA + 4 * mu), vr(bx(s, mu)), vr(bx(s, mu)), vr(GA + 4 * mu)))
        return m

    if PF and opt.get("sw"):
        for p in range(opt.get("np", 1)):
            e("s_waitcnt vmcnt(%d)" % (NPF0 - 1))
            if p == 0: stamp(e, opt, 4)
            e("s_barrier")
            e(pf_one())
        e("s_waitcnt vmcnt(%d)" % (NPF0 - 1))
    stamp(e, opt, 5)
    e("s_barrier")
    stamp(e, opt, 6)
    if PF:
        for _ in range(opt.get("npf1", 2)):
            if pfq: e(pf_one())
    if opt.get("pfonly"):
        while pfq:
            e("s_barrier")
            e(pf_one())
        e("s_endpgm")
    for r in b_reads(0, 0, 0):
        e(r)
    e("s_waitcnt lgkmcnt(0)")
    for c in range(NCH):
        for l in interleave(b_mfma(0), b_reads(c, 1, 1), per=2):
            e(l)
        e("s_waitcnt lgkmcnt(0)")
        if c < NCH - 1:
            if PF and opt.get("sw"):
                need = min(9, c + opt.get("swn", 3))
                e("s_waitcnt vmcnt(%d)" % max(0, (10 - len(pfq)) - 1 - need))
            e("s_barrier")
            oth = b_reads(c + 1, 0, 0)
            if PF and pfq:
                oth = [pf_one()] + oth
            for l in interleave(b_mfma(1), oth, per=2):
                e(l)
            e("s_waitcnt lgkmcnt(0)")
            if c == 3: stamp(e, opt, 7)
            if c == 6: stamp(e, opt, 8)
        else:
            for l in b_mfma(1):
                e(l)
    stamp(e, opt, 9)
    if opt.get("bprio", 1):
        e("s_setprio %d" % opt.get("bprio", 1))
    e("s_lshl_b32 s40, s4, 8")
    e("s_add_u32 s40, s40, %d" % ST_LDS)
    e("v_lshlrev_b32 v6, 2, v2")
    e("v_add_u32 v6, s40, v6")
    e("v_lshlrev_b32 v7, 4, v3")
    e("v_add_u32 v7, s40, v7")
    e("s_mov_b32 s58, 0xaaaaaaaa")
    e("s_mov_b32 s59, 0xaaaaaaaa")
    e("s_mov_b32 s60, 0xcccccccc")
    e("s_mov_b32 s61, 0xcccccccc")
    e("s_nop 2")
    for mu in range(2):
        g = GA + 4 * mu
        e("v_cndmask_b32_e64 v8, v%d, v%d, s[58:59]" % (g, g + 1))
        e("v_cndmask_b32_e64 v9, v%d, v%d, s[58:59]" % (g + 2, g + 3))
        e("v_cndmask_b32_e64 v%d, v8, v9, s[60:61]" % (10 + mu))
    e("s_mov_b32 exec_lo, 0x00f0000f")
    e("s_mov_b32 exec_hi, 0xf0000f00")
    for mu in range(2):
        e("ds_write_b32 v6, v%d offset:%d" % (10 + mu, 128 + mu * 64))
    e("s_mov_b32 exec_lo, 0x00100010")
    e("s_mov_b32 exec_hi, 0x00100010")
    for mu in range(2):
        e("ds_write_b128 v7, %s offset:%d" % (vr(za(mu, 2)), mu * 64))
    e("s_mov_b64 exec, -1")
    e("s_waitcnt lgkmcnt(0)")
    e("s_barrier")
    stamp(e, opt, 10)
    SUM = 48
    SQ = 56
    for mu in range(2):
        e("ds_read_b128 %s, v7 offset:%d" % (vr(SUM + 4 * mu), mu * 64))
        e("ds_read_b128 %s, v7 offset:%d" % (vr(SQ + 4 * mu), 128 + mu * 64))
    e("s_mov_b32 s40, 0x3acccccd")
    e("s_mov_b32 s41, 0x3727c5ac")
    e("s_waitcnt lgkmcnt(0)")
    for k in range(8):
        e("v_mul_f32 v%d, s40, v%d" % (SUM + k, SUM + k))
        e("v_mul_f32 v%d, s40, v%d" % (SQ + k, SQ + k))
        e("v_fma_f32 v%d, -v%d, v%d, v%d" % (SQ + k, SUM + k, SUM + k, SQ + k))
        e("v_add_f32 v%d, s41, v%d" % (SQ + k, SQ + k))
        e("v_rsq_f32 v%d, v%d" % (SQ + k, SQ + k))
    e("s_nop 0")
    ZF = 64
    for T in range(3):
        for mu in range(2):
            for hh in range(2):
                a = za(mu, T) + 2 * hh
                e("v_pk_mul_f32 %s, %s, %s" % (vr(a, 2), vr(a, 2), vr(SQ + 4 * mu + 2 * hh, 2)))
        for mu in range(2):
            for hh in range(2):
                a = za(mu, T) + 2 * hh
                e("v_cvt_pk_bf16_f32 v%d, v%d, v%d" % (ZF + 4 * T + 2 * mu + hh, a, a + 1))
    e("s_nop 1")
    def ur(t): return 16 + 4 * t
    def vv(t): return 24 + 4 * t
    def pp(t): return 32 + 4 * t
    def qq(t): return 40 + 4 * t
    def C(t): return TW + 4 * t
    def S(t): return TW + 8 + 4 * t
    def NC(t): return TW + 16 + 4 * t
    M = "v_mfma_f32_16x16x32_bf16 %s, %s, %s, %s"
    for t in range(2):
        e(M % (vr(ur(t)), vr(C(t)), vr(ZF), "0"))
        e(M % (vr(vv(t)), vr(S(t)), vr(ZF), "0"))
        e(M % (vr(pp(t)), vr(C(t)), vr(ZF + 8), "0"))
        e(M % (vr(qq(t)), vr(S(t)), vr(ZF + 8), "0"))
    for t in range(2):
        e(M % (vr(ur(t)), vr(S(t)), vr(ZF + 4), vr(ur(t))))
        e(M % (vr(vv(t)), vr(NC(t)), vr(ZF + 4), vr(vv(t))))
    e("s_mul_i32 s40, s5, 320")
    e("s_mul_i32 s41, s6, 20")
    e("s_add_u32 s40, s40, s41")
    e("s_lshl_b32 s40, s40, 4")
    e("s_add_u32 s40, s40, 0x%x" % WS_U)
    e("s_nop 4")
    OU = 128
    for t in range(2):
        for i in range(4):
            e("v_add_f32_dpp v%d, v%d, v%d row_shl:8 row_mask:0xf bank_mask:0xf bound_ctrl:0" % (48 + 8 * t + i, qq(t) + i, pp(t) + i))
            e("v_subrev_f32_dpp v%d, v%d, v%d row_shl:8 row_mask:0xf bank_mask:0xf bound_ctrl:0" % (52 + 8 * t + i, pp(t) + i, qq(t) + i))
    for t in range(2):
        for i in range(4):
            e("v_cvt_pk_bf16_f32 v%d, v%d, v%d" % (OU + 4 * t + i, ur(t) + i, vv(t) + i))
    for t in range(2):
        for i in range(4):
            e("ds_write_b32 v%d, v%d offset:%d" % (UW, OU + 4 * t + i, (16 * t + i) * 320))
    for t in range(2):
        for i in range(4):
            e("v_cvt_pk_bf16_f32 v%d, v%d, v%d" % (OU + 8 + 4 * t + i, 48 + 8 * t + i, 52 + 8 * t + i))
    e("s_mov_b32 exec_lo, 0x000f000f")
    e("s_mov_b32 exec_hi, 0x000f000f")
    for t in range(2):
        for i in range(4):
            e("ds_write_b32 v%d, v%d offset:%d" % (UW, OU + 8 + 4 * t + i, (16 * t + i) * 320 + 256))
    e("s_mov_b64 exec, -1")
    e("s_waitcnt lgkmcnt(0)")
    e("s_barrier")
    stamp(e, opt, 11)
    e("s_cmp_ge_u32 s4, 2")
    e("ds_read_b128 v[16:19], v%d" % UR_)
    e("ds_read_b128 v[20:23], v%d" % (UR_ + 1))
    e("s_cbranch_scc1 L1_B2")
    e("ds_read_b128 v[24:27], v%d" % (UR_ + 2))
    e("s_waitcnt lgkmcnt(0)")
    e("buffer_store_dwordx4 v[24:27], v%d, s[24:27], s40 offen%s" % (UG + 2, opt.get("ust", "")))
    e("L1_B2:")
    e("s_waitcnt lgkmcnt(0)")
    e("buffer_store_dwordx4 v[16:19], v%d, s[24:27], s40 offen%s" % (UG, opt.get("ust", "")))
    e("buffer_store_dwordx4 v[20:23], v%d, s[24:27], s40 offen%s" % (UG + 1, opt.get("ust", "")))
    stamp(e, opt, 12)
    prof_out(e, opt, 0, 12, 3, 24, vb=160)
    e("s_endpgm")

    e("L1_L:")
    if opt.get("lprio"):
        e("s_setprio %d" % opt["lprio"])
    VX = 112
    VW = 116
    VH = 119
    VH2 = 120
    VW2 = 125
    if opt.get("ls7"):
        e(opt["ls7"])
    e("v_lshrrev_b32 v6, 3, v1")
    e("v_and_b32 v7, 7, v1")
    e("v_xor_b32 v8, v7, v3")
    e("v_lshlrev_b32 v8, 4, v8")
    XS = opt.get("xs", 81920)
    e("s_mov_b32 s40, %d" % XS)
    e("v_mul_lo_u32 v9, v6, s40")
    e("v_add_u32 v9, v9, v8")
    e("s_mul_i32 s41, s7, %d" % opt.get("xr", 1280))
    for q in range(4):
        e("s_add_u32 s42, s41, %d" % (q * 8 * XS - q * 1024))
        if q % 2 == 0:
            e("v_add_u32 v%d, s42, v9" % (VX + q))
        else:
            e("v_xor_b32 v10, 64, v9")
            e("v_add_u32 v%d, s42, v10" % (VX + q))
    e("s_mul_i32 s41, s4, %d" % (16 * 3072))
    e("s_mul_i32 s42, s6, 192")
    e("s_add_u32 s41, s41, s42")
    for i in range(3):
        e("v_add_u32 v10, %d, v1" % (64 * i))
        e("v_mul_u32_u24 v11, 171, v10")
        e("v_lshrrev_b32 v11, 11, v11")
        e("v_mul_u32_u24 v12, 12, v11")
        e("v_sub_u32 v12, v10, v12")
        e("v_lshrrev_b32 v13, 3, v11")
        e("v_lshlrev_b32 v13, 1, v13")
        e("v_xor_b32 v12, v12, v13")
        e("v_mul_u32_u24 v11, 3072, v11")
        e("v_lshl_add_u32 v11, v12, 4, v11")
        e("s_sub_u32 s42, s41, %d" % (i * 1024))
        e("v_add_u32 v%d, s42, v11" % (VW + i))
    e("s_and_b32 s41, s4, 1")
    e("s_mul_i32 s42, s6, 20")
    e("s_lshl_b32 s43, s41, 3")
    e("s_add_u32 s43, s43, s42")
    e("v_add_u32 v10, s43, v6")
    e("v_mov_b32 v11, 320")
    e("v_cmp_eq_u32 vcc, 0, v10")
    e("s_lshl_b32 s43, s41, 6")
    e("v_xor_b32 v12, s43, v8")
    e("v_cndmask_b32 v10, v10, v11, vcc")
    e("v_mul_u32_u24 v10, 1280, v10")
    e("v_add_u32 v%d, v10, v12" % VH)
    e("s_add_u32 s43, s42, 16")
    e("v_add_u32 v10, s43, v6")
    e("v_and_b32 v10, 0x1ff, v10")
    e("s_cmp_eq_u32 s4, 1")
    e("s_cselect_b32 s43, 0, 1280")
    e("v_mul_lo_u32 v10, v10, s43")
    e("s_lshl_b32 s43, s4, 1")
    e("v_add_u32 v11, s43, v3")
    e("v_and_b32 v11, 7, v11")
    e("v_xor_b32 v11, v11, v7")
    e("v_lshl_add_u32 v%d, v11, 4, v10" % VH2)
    e("s_lshl_b32 s50, s4, 12")
    e("s_mul_i32 s51, s4, 3072")
    e("s_add_u32 s51, s51, %d" % W1_LDS)
    e("s_lshl_b32 s52, s4, 10")
    e("s_add_u32 s52, s52, %d" % H_LDS)
    e("s_lshl_b32 s53, s4, 9")
    e("s_add_u32 s53, s53, %d" % (H_LDS + 4096))
    stamp(e, opt, 13)
    e("s_waitcnt lgkmcnt(0)")
    stamp(e, opt, 2)
    srd(e, 8, 28, 2048 * 1280)
    srd(e, 12, 34, 640 * 3072)
    e("s_cmp_ge_u32 s4, 2")
    e("s_cselect_b32 s16, s32, s30")
    e("s_cselect_b32 s17, s33, s31")
    e("s_mov_b32 s18, %d" % (640 * 1280))
    e("s_mov_b32 s19, 0x00020000")
    srd(e, 20, 36, 1536 * 1280)
    srd(e, 24, 38, WS_END)

    if opt.get("rot3"):
        rot_calc(e, opt)
    elif opt.get("rot"):
        e(opt["rot"])
    else:
        e("s_mov_b32 s62, 0")
    def dma(c):
        slot = c % 4
        r = []
        pre = "s_add_u32 s63, s62, %d\ns_cmp_ge_u32 s63, 10\ns_cselect_b32 s54, 10, 0\ns_sub_u32 s63, s63, s54\ns_lshl_b32 s54, s63, 7\ns_mul_i32 s55, s63, 196608\n" % c
        r.append(pre + "s_add_u32 m0, s50, %d\ns_nop 0\nbuffer_load_dwordx4 v%d, s[8:11], s54 offen lds" % (slot * 16384, VX))
        for q in range(1, 4):
            r.append("buffer_load_dwordx4 v%d, s[8:11], s54 offen offset:%d lds" % (VX + q, q * 1024))
        r.append("s_add_u32 m0, s51, %d\ns_nop 0\nbuffer_load_dwordx4 v%d, s[12:15], s55 offen lds" % (slot * 12288, VW))
        for i in range(1, 3):
            r.append("buffer_load_dwordx4 v%d, s[12:15], s55 offen offset:%d lds" % (VW + i, i * 1024))
        r.append("s_add_u32 m0, s52, %d\ns_nop 0\nbuffer_load_dwordx4 v%d, s[16:19], s54 offen lds" % (slot * 6144, VH))
        r.append("s_add_u32 m0, s53, %d\ns_mov_b32 exec_hi, 0\nbuffer_load_dwordx4 v%d, s[16:19], s54 offen lds\ns_mov_b32 exec_hi, -1" % (slot * 6144, VH2))
        return r

    issued = []
    queue = []
    if opt.get("nch"):
        NCH = opt["nch"]
    skip = opt.get("skip", [])
    for c in range(NCH):
        for li, l in enumerate(dma(c)):
            if li in skip:
                l = "\n".join(x for x in l.split("\n") if not x.startswith("buffer_load"))
                if l: e_skip = l
                queue.append((c, -1 if c < 4 else c - 3, l + "\ns_nop 0", True))
                continue
            queue.append((c, -1 if c < 4 else c - 3, l, False))
    def take(pos, budget):
        out = []
        n = 0
        while queue and queue[0][1] <= pos and n < budget:
            c, _, t, sk = queue.pop(0)
            out.append(t)
            if not sk:
                issued.append(c)
                n += 1
        return out
    def allowed_after(c):
        last = max(i for i, t in enumerate(issued) if t <= c)
        return len(issued) - 1 - last
    SPF = opt.get("spf", 0)
    spfq = list(range(10))
    def spf_one():
        spfq.pop(0)
        r = []
        for jj in range(4):
            r.append("s_buffer_load_dword s31, s[8:11], s28 offset:%d" % (jj * 81920))
        for t in range(6):
            r.append("s_buffer_load_dword s31, s[12:15], s29 offset:%d" % (t * 128))
            if opt.get("s64"):
                r.append("s_buffer_load_dword s31, s[12:15], s29 offset:%d" % (t * 128 + 64))
        for t in range(3):
            r.append("s_buffer_load_dword s31, s[16:19], s30 offset:%d" % (t * 1280))
        if opt.get("s64"):
            for jj in range(4):
                r.append("s_buffer_load_dword s31, s[8:11], s28 offset:%d" % (jj * 81920 + 64))
            for t in range(3):
                r.append("s_buffer_load_dword s31, s[16:19], s30 offset:%d" % (t * 1280 + 64))
        r.append("s_add_u32 s28, s28, 128\ns_add_u32 s29, s29, 196608\ns_add_u32 s30, s30, 128")
        return r
    if SPF:
        e("s_lshr_b32 s40, s2, 5")
        e("s_and_b32 s41, s40, 1")
        e("s_lshl_b32 s41, s41, 4")
        e("s_lshl_b32 s42, s4, 2")
        e("s_add_u32 s41, s41, s42")
        e("s_lshl_b32 s41, s41, 6")
        e("s_lshl_b32 s42, s5, 2")
        e("s_add_u32 s41, s41, s42")
        e("s_lshr_b32 s40, s40, 1")
        e("s_add_u32 s41, s41, s40")
        e("s_mul_i32 s28, s41, 1280")
        e("s_lshr_b32 s40, s2, 3")
        e("s_lshl_b32 s41, s40, 1")
        e("s_lshr_b32 s42, s4, 1")
        e("s_add_u32 s41, s41, s42")
        e("s_mul_i32 s41, s41, 3072")
        e("s_and_b32 s42, s2, 1")
        e("s_mul_i32 s43, s42, 1536")
        e("s_add_u32 s41, s41, s43")
        e("s_and_b32 s43, s4, 1")
        e("s_mul_i32 s29, s43, 768")
        e("s_add_u32 s29, s29, s41")
        e("s_mul_i32 s42, s42, 160")
        e("s_mul_i32 s40, s40, 5")
        e("s_add_u32 s42, s42, s40")
        e("s_mul_i32 s43, s43, 3")
        e("s_add_u32 s42, s42, s43")
        e("s_mul_i32 s30, s42, 1280")
        for _ in range(SPF):
            for l in spf_one():
                e(l)
        e("s_waitcnt lgkmcnt(0)")
        stamp(e, opt, 13)
        if opt.get("spb"):
            e("s_barrier")
    if PF:
        e("s_barrier")
    for l in take(-1, 9):
        e(l)
    stamp(e, opt, 3)
    if PF:
        for _ in range(opt.get("np", 1) - 1):
            e("s_barrier")
            for l in take(-1, 9):
                e(l)
    for l in take(-1, opt.get("lpre", 18) - 9 * (opt.get("np", 1) if PF else 1)):
        e(l)
    stamp(e, opt, 4)
    e("s_cmp_ge_u32 s2, 240")
    e("s_cselect_b32 s43, 240, 0")
    e("s_sub_u32 s43, s2, s43")
    e("s_mul_i32 s47, s43, 1366")
    e("s_lshr_b32 s47, s47, 16")
    e("s_mul_i32 s48, s47, 48")
    e("s_sub_u32 s48, s43, s48")
    e("v_lshrrev_b32 v10, 2, v1")
    e("v_mul_u32_u24 v10, 1280, v10")
    e("v_and_b32 v11, 3, v1")
    e("v_lshl_add_u32 v10, v11, 4, v10")
    e("s_mul_i32 s43, s48, %d" % (32 * 1280))
    e("s_lshl_b32 s49, s47, 8")
    e("s_add_u32 s43, s43, s49")
    e("s_lshl_b32 s49, s4, 6")
    e("s_add_u32 s43, s43, s49")
    e("v_add_u32 v%d, s43, v10" % VW2)
    e("s_lshl_b32 s56, s4, 11")
    e("s_add_u32 s56, s56, %d" % W2S_LDS)
    e("s_mov_b32 s57, %d" % (16 * 1280 - 1024))
    e("v_lshrrev_b32 v8, 2, v2")
    e("v_lshl_add_u32 v8, v3, 2, v8")
    e("v_lshlrev_b32 v8, 6, v8")
    e("v_and_b32 v9, 3, v2")
    e("v_lshl_add_u32 v8, v9, 3, v8")
    e("v_add_u32 v8, s56, v8")
    e("v_lshlrev_b32 v9, 4, v1")
    e("s_lshl_b32 s40, s47, 3")
    e("s_lshl_b32 s41, s4, 1")
    e("s_add_u32 s40, s40, s41")
    e("s_mul_i32 s40, s40, 48")
    e("s_add_u32 s40, s40, s48")
    e("s_lshl_b32 s40, s40, 10")
    e("s_add_u32 s40, s40, 0x%x" % WS_W2T)
    e("s_add_u32 s41, s40, %d" % (48 * 1024))
    stamp(e, opt, 5)
    e("s_waitcnt vmcnt(%d)" % allowed_after(0))
    e("s_barrier")
    stamp(e, opt, 6)
    W2F = 128
    w2pos = opt.get("w2pos", NCH - 3)
    for c in range(NCH - 1):
        for l in take(c, opt.get("lb0", 9) if c == 0 else opt.get("lb", 12)):
            e(l)
        if SPF and spfq:
            for l in spf_one():
                e(l)
        if c == w2pos:
            assert not queue
            e("s_mov_b32 m0, s56")
            e("s_nop 0")
            e("buffer_load_dwordx4 v%d, s[20:23], 0 offen lds" % VW2)
            e("buffer_load_dwordx4 v%d, s[20:23], s57 offen offset:1024 lds" % VW2)
            issued.extend([99, 99])
        e("s_waitcnt vmcnt(%d)" % allowed_after(c + 1))
        e("s_barrier")
        if c == 0: stamp(e, opt, 10)
        if c == 1: stamp(e, opt, 12)
        if c == (3 if NCH == 10 else 9): stamp(e, opt, 7)
        if c == (6 if NCH == 10 else 14): stamp(e, opt, 8)
    assert not queue
    stamp(e, opt, 9)
    e("s_waitcnt vmcnt(0)")
    for t in range(2):
        for hh in range(2):
            e("ds_read_b64_tr_b16 %s, v8 offset:%d" % (vr(W2F + 4 * t + 2 * hh, 2), hh * 1024 + t * 32))
    e("s_waitcnt lgkmcnt(0)")
    e("buffer_store_dwordx4 %s, v9, s[24:27], s40 offen%s" % (vr(W2F), opt.get("wst", "")))
    e("buffer_store_dwordx4 %s, v9, s[24:27], s41 offen%s" % (vr(W2F + 4), opt.get("wst", "")))
    stamp(e, opt, 11)
    prof_out(e, opt, 0, 12, 3, 24, vb=160)
    e("L1_END:")
    e("s_endpgm")
    return e.text()


HEAD = """; Kernarg layout for this problem (88 bytes, ptrs only, base s[0:1]):
"""


def kernel_wrap(name, body, vgpr=256, sgpr=102, accum=None):
    accum = accum or vgpr
    txt = ".globl %s\n.p2align 8\n.type %s,@function\n%s:\n%s" % (name, name, name, body)
    desc = """.p2align 6
.amdhsa_kernel %s
  .amdhsa_next_free_vgpr %d
  .amdhsa_next_free_sgpr %d
  .amdhsa_accum_offset %d
  .amdhsa_group_segment_fixed_size 0
  .amdhsa_kernarg_size 88
  .amdhsa_user_sgpr_count 2
  .amdhsa_user_sgpr_kernarg_segment_ptr 1
  .amdhsa_system_sgpr_workgroup_id_x 1
.end_amdhsa_kernel
""" % (name, vgpr, sgpr, accum)
    return txt, desc


DEF = {"hst": "", "rbm": 1, "wst": " sc1", "ust": " sc1", "pre2": 2, "hb2": 5, "yb2": 4, "xc2": 9, "pf": 0, "lprio": 3, "lpre": 18, "lb0": 9, "lb": 12, "rot3": [0, 0, 3, 5]}


def build(opt=None, only_l1=False):
    global PROF_ON
    o = dict(DEF)
    o.update(opt or {})
    opt = o
    PROF_ON = bool(opt.get("prof"))
    k1 = KN + "_kernel"
    k2 = "fnet_l2_kernel"
    launches = ["; @launch kernel=%s grid=(256,1,1) block=(768,1,1) lds=%d" % (k1, L1_LDS)]
    t1, d1 = kernel_wrap(k1, gen_l1(opt), vgpr=168)
    txt = [t1]
    desc = [d1]
    if not only_l1:
        from gen2 import gen_l2, L2_LDS, L2_BLOCK, L2_VGPR, L2_ACC
        launches.append("; @launch kernel=%s grid=(256,1,1) block=(%d,1,1) lds=%d" % (k2, L2_BLOCK, L2_LDS))
        t2, d2 = kernel_wrap(k2, gen_l2(opt), vgpr=L2_VGPR, accum=L2_ACC)
        txt.append(t2)
        desc.append(d2)
    s = HEAD + "\n".join(launches) + "\n.amdgcn_target \"amdgcn-amd-amdhsa--gfx950\"\n.text\n" + "\n".join(txt)
    s += ".section .rodata,\"a\"\n" + "".join(desc)
    return s


if __name__ == "__main__":
    only = len(sys.argv) > 1 and sys.argv[1] == "l1"
    s = build({}, only_l1=only)
    out = "cdna_kernels/%s.s" % KN if not only else "l1.s"
    open(out, "w").write(s)
    print("wrote", out, len(s))
```

```python
import sys
KN = "recurrent_scan__spectral_fnet__dense_activation_silu__prompt"

WS_H = 0
WS_U = 0x600000
WS_W2T = 0x880000
WS_END = 0xA60000
WS_W2L = 0x1000000
W2L_SZ = 0xF0000
WS_END2 = WS_W2L + 8 * W2L_SZ


PROF_ON = False


class E:
    def __init__(self):
        self.L = []

    def __call__(self, s):
        for x in s.split("\n"):
            x = x.strip()
            if x:
                self.L.append(x)

    def text(self):
        return "\n".join(("" if l.endswith(":") else "  ") + l for l in self.L) + "\n"


def vr(b, n=4):
    return "v[%d:%d]" % (b, b + n - 1)


def srd(e, d, lo, nbytes):
    if nbytes == WS_END and PROF_ON:
        nbytes = 0x1000000
    e("s_mov_b32 s%d, s%d" % (d, lo))
    e("s_mov_b32 s%d, s%d" % (d + 1, lo + 1))
    e("s_mov_b32 s%d, 0x%x" % (d + 2, nbytes))
    e("s_mov_b32 s%d, 0x00020000" % (d + 3))


PROF_BASE = 0xB00000


def stamp(e, opt, i, real=False):
    if opt.get("prof"):
        e("%s s[%d:%d]" % ("s_memrealtime" if real else "s_memtime", 70 + 2 * i, 71 + 2 * i))


def prof_out(e, opt, kern, nwaves, wave_sreg, srd0, n=16, vb=240):
    if not opt.get("prof"):
        return
    e("s_mov_b64 exec, -1")
    e("s_waitcnt vmcnt(0)")
    stamp(e, opt, n - 2)
    stamp(e, opt, n - 1, real=True)
    e("s_waitcnt lgkmcnt(0)")
    e("s_mul_i32 s68, s2, %d" % nwaves)
    e("s_add_u32 s68, s68, s%d" % wave_sreg)
    e("s_lshl_b32 s68, s68, 6")
    e("s_add_u32 s68, s68, 0x%x" % (PROF_BASE + kern * 0x40000))
    e("v_mov_b32 v%d, 0" % (vb + 4))
    for i in range(n):
        e("v_mov_b32 v%d, s%d" % (vb + (i % 4), 70 + 2 * i))
        if i % 4 == 3:
            e("s_mov_b64 exec, 1")
            e("buffer_store_dwordx4 v[%d:%d], v%d, s[%d:%d], s68 offen offset:%d" % (vb, vb + 3, vb + 4, srd0, srd0 + 3, (i // 4) * 16))
            e("s_waitcnt vmcnt(0)")
            e("s_mov_b64 exec, -1")


def interleave(mf, other, per=2, start=0):
    out = []
    o = list(other)
    for i, m in enumerate(mf):
        out.append(m)
        if i >= start:
            for _ in range(per):
                if o:
                    out.append(o.pop(0))
    out += o
    return out


X_LDS = 0
W1_LDS = 65536
H_LDS = 114688
W2S_LDS = 139264
ST_LDS = 147456
CS_LDS = 148480
L1_LDS = 148864


def rot_calc(e, opt):
    a, b, q, p = opt["rot3"]
    e("s_lshr_b32 s40, s2, 5")
    e("s_mul_i32 s40, s40, %d" % a)
    e("s_lshr_b32 s41, s2, 3")
    e("s_and_b32 s41, s41, 3")
    e("s_mul_i32 s41, s41, %d" % b)
    e("s_add_u32 s40, s40, s41")
    e("s_lshr_b32 s41, s2, 1")
    e("s_and_b32 s41, s41, 3")
    e("s_mul_i32 s41, s41, %d" % q)
    e("s_add_u32 s40, s40, s41")
    e("s_and_b32 s41, s2, 1")
    e("s_mul_i32 s41, s41, %d" % p)
    e("s_add_u32 s40, s40, s41")
    e("s_mul_i32 s41, s40, 205")
    e("s_lshr_b32 s41, s41, 11")
    e("s_mul_i32 s41, s41, 10")
    e("s_sub_u32 s62, s40, s41")


def gen_l1(opt):
    e = E()
    NCH = 10
    e("s_cmp_ge_u32 s2, 256")
    e("s_cbranch_scc1 L1_END")
    stamp(e, opt, 0, real=True)
    stamp(e, opt, 1)
    e("s_load_dwordx2 s[28:29], s[0:1], 0")
    e("s_load_dwordx2 s[30:31], s[0:1], 24")
    e("s_load_dwordx2 s[32:33], s[0:1], 32")
    e("s_load_dwordx2 s[34:35], s[0:1], 48")
    e("s_load_dwordx2 s[36:37], s[0:1], 56")
    e("s_load_dwordx2 s[38:39], s[0:1], 80")
    e("v_lshrrev_b32 v2, 6, v0")
    e("v_and_b32 v1, 63, v0")
    e("v_readfirstlane_b32 s3, v2")
    e("s_and_b32 s40, s2, 7")
    e("s_lshr_b32 s41, s2, 3")
    if opt.get("rbm"):
        e("s_and_b32 s5, s40, 6")
        e("s_and_b32 s42, s41, 1")
        e("s_add_u32 s5, s5, s42")
        e("s_and_b32 s42, s41, 2")
        e("s_lshl_b32 s42, s42, 2")
        e("s_add_u32 s5, s5, s42")
    else:
        e("s_lshr_b32 s5, s40, 1")
        e("s_lshl_b32 s5, s5, 2")
        e("s_and_b32 s42, s41, 3")
        e("s_add_u32 s5, s5, s42")
    e("s_and_b32 s6, s40, 1")
    e("s_lshl_b32 s6, s6, 3")
    e("s_lshr_b32 s42, s41, 2")
    e("s_add_u32 s6, s6, s42")
    e("s_and_b32 s4, s3, 3")
    e("s_lshl_b32 s7, s5, 2")
    e("s_add_u32 s7, s7, s4")
    e("v_and_b32 v2, 15, v1")
    e("v_lshrrev_b32 v3, 4, v1")
    e("v_lshrrev_b32 v6, 1, v2")
    e("v_xor_b32 v6, v6, v3")
    e("v_lshlrev_b32 v6, 4, v6")
    e("v_lshl_add_u32 v4, v2, 7, v6")
    e("v_xor_b32 v5, 64, v4")
    if opt.get("lonly"):
        e("s_cmp_lt_u32 s3, 8")
        e("s_cbranch_scc1 L1_END")
    e("s_cmp_ge_u32 s3, 4")
    e("s_cbranch_scc1 L1_B")

    ACC = 16
    CSA = 64
    FR = [72, 104]
    ONES = 136
    XA = 140
    WA = 142
    def acc(mu, p, u): return ACC + ((mu * 3 + p) * 2 + u) * 4
    def fx(s, mu): return FR[s] + mu * 4
    def fw(s, p, u): return FR[s] + 8 + (p * 2 + u) * 4
    e("s_cmp_eq_u32 s4, 3")
    e("s_cselect_b32 s8, 0, s4")
    e("s_lshl_b32 s40, s4, 12")
    e("v_add_u32 v%d, s40, v4" % XA)
    e("v_add_u32 v%d, s40, v5" % (XA + 1))
    e("v_lshrrev_b32 v6, 2, v2")
    e("v_lshl_add_u32 v6, v3, 3, v6")
    e("v_mul_u32_u24 v6, 192, v6")
    e("v_and_b32 v7, 1, v2")
    e("v_lshl_add_u32 v6, v7, 3, v6")
    e("v_lshrrev_b32 v7, 1, v2")
    e("v_and_b32 v7, 1, v7")
    e("v_and_b32 v8, 1, v3")
    e("v_lshlrev_b32 v8, 1, v8")
    e("v_xor_b32 v7, v7, v8")
    e("v_lshl_add_u32 v6, v7, 4, v6")
    e("v_xor_b32 v7, 32, v6")
    for p in range(3):
        e("s_add_u32 s40, s8, %d" % p)
        e("s_cmp_ge_u32 s40, 3")
        e("s_cselect_b32 s41, 3, 0")
        e("s_sub_u32 s40, s40, s41")
        e("s_mov_b32 s%d, s40" % (44 + p))
        e("s_lshl_b32 s40, s40, 6")
        e("s_add_u32 s40, s40, %d" % W1_LDS)
        e("v_add_u32 v%d, s40, v6" % (WA + 2 * p))
        e("v_add_u32 v%d, s40, v7" % (WA + 2 * p + 1))
    for i in range(48 + 8):
        e("v_mov_b32 v%d, 0" % (ACC + i))
    for i in range(4):
        e("v_mov_b32 v%d, 0x3f803f80" % (ONES + i))

    def a_reads(c, ks, s):
        slot = c % 4
        r = []
        for mu in range(2):
            r.append("ds_read_b128 %s, v%d offset:%d" % (vr(fx(s, mu)), XA + ks, slot * 16384 + mu * 2048))
        for p in range(3):
            for u in range(2):
                for h in range(2):
                    r.append("ds_read_b64_tr_b16 %s, v%d offset:%d" % (vr(fw(s, p, u) + 2 * h, 2), WA + 2 * p + u, slot * 12288 + ks * 6144 + h * 768))
        return r

    def a_mfma(s):
        m = []
        for p in range(3):
            for u in range(2):
                for mu in range(2):
                    m.append("v_mfma_f32_16x16x32_bf16 %s, %s, %s, %s" % (vr(acc(mu, p, u)), vr(fw(s, p, u)), vr(fx(s, mu)), vr(acc(mu, p, u))))
                if p == 0:
                    m.append("v_mfma_f32_16x16x32_bf16 %s, %s, %s, %s" % (vr(CSA + 4 * u), vr(fw(s, 0, u)), vr(ONES), vr(CSA + 4 * u)))
        return m

    PF = opt.get("pf", 1)
    if PF:
        for _ in range(opt.get("np", 1)):
            e("s_barrier")
    stamp(e, opt, 5)
    e("s_barrier")
    if opt.get("pfonly"):
        e("s_endpgm")
    stamp(e, opt, 6)
    for r in a_reads(0, 0, 0):
        e(r)
    e("s_waitcnt lgkmcnt(0)")
    for c in range(NCH):
        for l in interleave(a_mfma(0), a_reads(c, 1, 1), per=2):
            e(l)
        e("s_waitcnt lgkmcnt(0)")
        if c < NCH - 1:
            e("s_barrier")
            for l in interleave(a_mfma(1), a_reads(c + 1, 0, 0), per=2):
                e(l)
            e("s_waitcnt lgkmcnt(0)")
            if c == 3: stamp(e, opt, 7)
            if c == 6: stamp(e, opt, 8)
        else:
            for l in a_mfma(1):
                e(l)
    stamp(e, opt, 9)
    T = 148
    e("v_lshlrev_b32 v6, 4, v3")
    e("s_lshl_b32 s40, s8, 7")
    e("s_add_u32 s40, s40, %d" % CS_LDS)
    e("v_add_u32 v7, s40, v6")
    e("s_lshl_b32 s40, s4, 8")
    e("s_add_u32 s40, s40, %d" % ST_LDS)
    e("v_lshlrev_b32 v8, 2, v2")
    e("v_add_u32 v8, s40, v8")
    for p in range(3):
        e("s_lshl_b32 s40, s%d, 7" % (44 + p))
        e("s_add_u32 s40, s40, %d" % CS_LDS)
        e("v_add_u32 v%d, s40, v6" % (9 + p))
    e("v_lshlrev_b32 v12, 4, v1")
    e("s_mov_b32 exec_lo, 0x00010001")
    e("s_mov_b32 exec_hi, 0x00010001")
    e("s_nop 4")
    e("ds_write_b128 v7, %s" % vr(CSA))
    e("ds_write_b128 v7, %s offset:64" % vr(CSA + 4))
    e("s_mov_b64 exec, -1")
    srd(e, 24, 38, WS_END)
    e("s_waitcnt lgkmcnt(0)")
    e("s_barrier")
    stamp(e, opt, 10)
    for mu in range(2):
        e("ds_read_b32 v%d, v8 offset:%d" % (72 + 2 * mu, mu * 64))
        e("ds_read_b32 v%d, v8 offset:%d" % (76 + 2 * mu, 128 + mu * 64))
    CSR = 80
    for p in range(3):
        for u in range(2):
            e("ds_read_b128 %s, v%d offset:%d" % (vr(CSR + (p * 2 + u) * 4), 9 + p, u * 64))
    e("s_mov_b32 s40, 0x3acccccd")
    e("s_mov_b32 s41, 0x3727c5ac")
    e("s_mov_b32 s42, 0xbfb8aa3b")
    e("v_mov_b32 v104, 1.0")
    e("v_mov_b32 v105, 1.0")
    e("s_waitcnt lgkmcnt(6)")
    for mu in range(2):
        m, q = 72 + 2 * mu, 76 + 2 * mu
        e("v_mul_f32 v%d, s40, v%d" % (m, m))
        e("v_mul_f32 v%d, s40, v%d" % (q, q))
        e("v_fma_f32 v%d, -v%d, v%d, v%d" % (q, m, m, q))
        e("v_add_f32 v%d, s41, v%d" % (q, q))
        e("v_rsq_f32 v%d, v%d" % (q, q))
    e("s_nop 0")
    for mu in range(2):
        q = 76 + 2 * mu
        e("v_mul_f32 v%d, s42, v%d" % (106 + 2 * mu, q))
    e("s_waitcnt lgkmcnt(0)")
    e("s_mul_i32 s40, s7, 96")
    e("s_mul_i32 s41, s6, 3")
    e("s_add_u32 s40, s40, s41")
    TT = 112
    ZZ = 120
    OUT = 128
    n = 0
    for mu in range(2):
        m, r_, rn = 72 + 2 * mu, 76 + 2 * mu, 106 + 2 * mu
        for p in range(3):
            for u in range(2):
                for hh in range(2):
                    a = acc(mu, p, u) + 2 * hh
                    cs = CSR + (p * 2 + u) * 4 + 2 * hh
                    t = TT + u * 4 + hh * 2
                    e("v_pk_fma_f32 %s, %s, %s, %s op_sel_hi:[1,0,1] neg_lo:[0,1,0] neg_hi:[0,1,0]" % (vr(t, 2), vr(cs, 2), vr(m, 2), vr(a, 2)))
            for k in range(4):
                e("v_pk_mul_f32 %s, %s, %s op_sel_hi:[1,0]" % (vr(ZZ + 2 * k, 2), vr(TT + 2 * k, 2), vr(rn, 2)))
            for k in range(8):
                e("v_exp_f32 v%d, v%d" % (ZZ + k, ZZ + k))
            for k in range(4):
                e("v_pk_mul_f32 %s, %s, %s op_sel_hi:[1,0]" % (vr(TT + 2 * k, 2), vr(TT + 2 * k, 2), vr(r_, 2)))
            for k in range(4):
                e("v_pk_add_f32 %s, %s, v[104:105]" % (vr(ZZ + 2 * k, 2), vr(ZZ + 2 * k, 2)))
            for k in range(8):
                e("v_rcp_f32 v%d, v%d" % (ZZ + k, ZZ + k))
            e("s_add_u32 s41, s40, s%d" % (44 + p))
            e("s_add_u32 s41, s41, %d" % (mu * 48))
            e("s_lshl_b32 s41, s41, 10")
            for k in range(4):
                e("v_pk_mul_f32 %s, %s, %s" % (vr(TT + 2 * k, 2), vr(TT + 2 * k, 2), vr(ZZ + 2 * k, 2)))
            o = OUT + 4 * n
            for k in range(4):
                e("v_cvt_pk_bf16_f32 v%d, v%d, v%d" % (o + k, TT + 2 * k, TT + 2 * k + 1))
            e("buffer_store_dwordx4 %s, v12, s[24:27], s41 offen%s" % (vr(o), opt.get("hst", "")))
            n += 1
            if n == opt.get("be2", 4):
                e("s_barrier")
    stamp(e, opt, 11)
    prof_out(e, opt, 0, 12, 3, 24, vb=160)
    e("s_endpgm")

    e("L1_B:")
    e("s_cmp_ge_u32 s3, 8")
    e("s_cbranch_scc1 L1_L")
    ZA = 16
    GA = 40
    FB = [48, 68]
    TW = 88
    XB = 121
    HB = 123
    UW = 125
    UR_ = 112
    UG = 115
    def za(mu, T): return ZA + (mu * 3 + T) * 4
    def bx(s, mu): return FB[s] + mu * 4
    def bh(s, T): return FB[s] + 8 + T * 4
    NPF0 = opt.get("npf0", 3)
    pfq = list(range(10))
    def pf_one():
        pfq.pop(0)
        t = "s_mul_i32 s64, s62, s65\n"
        if opt.get("pfm"):
            t += "s_mov_b64 exec, s[66:67]\nbuffer_load_dword v153, v152, s[8:11], s64 offen\ns_mov_b64 exec, -1\n"
        else:
            t += "buffer_load_dword v153, v152, s[8:11], s64 offen\n"
        t += "s_add_u32 s62, s62, 1\ns_cmp_eq_u32 s62, 10\ns_cselect_b32 s62, 0, s62"
        return t
    if PF:
        if opt.get("rot3"):
            rot_calc(e, opt)
        else:
            e("s_mov_b32 s62, 0")
        e("s_lshr_b32 s40, s2, 3")
        e("s_and_b32 s41, s2, 1")
        e("s_mov_b32 s64, 0")
        e("s_mov_b32 s66, 0x55555555")
        e("s_mov_b32 s67, 0x55555555")
        e("s_cmp_eq_u32 s4, 0")
        e("s_cbranch_scc1 L1_BPX")
        e("s_cmp_eq_u32 s4, 1")
        e("s_cbranch_scc1 L1_BPW")
        e("s_mul_i32 s42, s41, 160")
        e("s_mul_i32 s43, s40, 5")
        e("s_add_u32 s42, s42, s43")
        e("s_mul_i32 s42, s42, 1280")
        e("v_lshrrev_b32 v152, 1, v1")
        e("v_min_u32 v152, 4, v152")
        e("v_mul_u32_u24 v152, 1280, v152")
        e("v_and_b32 v153, 1, v1")
        e("v_lshl_add_u32 v152, v153, 6, v152")
        e("v_add_u32 v152, s42, v152")
        e("s_mov_b32 s65, 128")
        e("s_mov_b32 s66, 0x155")
        e("s_mov_b32 s67, 0")
        e("s_waitcnt lgkmcnt(0)")
        e("s_cmp_eq_u32 s4, 2")
        e("s_cselect_b32 s8, s30, s32")
        e("s_cselect_b32 s9, s31, s33")
        e("s_mov_b32 s10, %d" % (640 * 1280))
        e("s_branch L1_BPJ")
        e("L1_BPW:")
        e("s_lshl_b32 s42, s40, 1")
        e("s_mul_i32 s42, s42, 3072")
        e("s_mul_i32 s43, s41, 1536")
        e("s_add_u32 s42, s42, s43")
        e("v_add_u32 v153, -48, v1")
        e("v_min_u32 v153, v153, v1")
        e("v_cmp_lt_u32 vcc, 23, v153")
        e("v_mov_b32 v154, %d" % (3072 - 24 * 64))
        e("s_mov_b32 s65, 196608")
        e("s_mov_b32 s67, 0x5555")
        e("v_cndmask_b32 v152, 0, v154, vcc")
        e("v_lshl_add_u32 v152, v153, 6, v152")
        e("v_add_u32 v152, s42, v152")
        e("s_waitcnt lgkmcnt(0)")
        e("s_mov_b32 s8, s34")
        e("s_mov_b32 s9, s35")
        e("s_mov_b32 s10, %d" % (640 * 3072))
        e("s_branch L1_BPJ")
        e("L1_BPX:")
        e("s_lshr_b32 s40, s2, 5")
        e("s_and_b32 s41, s40, 1")
        e("s_lshl_b32 s41, s41, 10")
        e("s_lshl_b32 s42, s5, 2")
        e("s_add_u32 s41, s41, s42")
        e("s_lshr_b32 s40, s40, 1")
        e("s_add_u32 s41, s41, s40")
        e("s_mul_i32 s41, s41, 1280")
        e("v_bfe_u32 v152, v1, 1, 4")
        e("v_mul_u32_u24 v152, 0x14000, v152")
        e("v_and_b32 v153, 1, v1")
        e("v_lshl_add_u32 v152, v153, 6, v152")
        e("v_add_u32 v152, s41, v152")
        e("s_mov_b32 s65, 128")
        e("s_mov_b32 s67, 0")
        e("s_waitcnt lgkmcnt(0)")
        e("s_mov_b32 s8, s28")
        e("s_mov_b32 s9, s29")
        e("s_mov_b32 s10, %d" % (2048 * 1280))
        e("L1_BPJ:")
        e("s_mov_b32 s11, 0x00020000")
        for _ in range(NPF0):
            e(pf_one())
        stamp(e, opt, 3)
        if not opt.get("sw"):
            e("s_waitcnt vmcnt(%d)" % opt.get("pfw", NPF0 - 1))
            stamp(e, opt, 4)
            e("s_barrier")
    e("s_lshl_b32 s50, s4, 12")
    e("v_add_u32 v%d, s50, v4" % XB)
    e("v_add_u32 v%d, s50, v5" % (XB + 1))
    e("v_add_u32 v%d, %d, v4" % (HB, H_LDS))
    e("v_add_u32 v%d, %d, v5" % (HB + 1, H_LDS))
    e("v_mul_u32_u24 v6, 1280, v3")
    e("v_lshl_add_u32 v6, v2, 4, v6")
    e("s_lshl_b32 s40, s4, 2")
    e("v_add_u32 v%d, s40, v6" % UW)
    e("s_lshl_b32 s40, s4, 6")
    e("s_mov_b32 s41, 81920")
    for rr in range(3):
        e("s_add_u32 s42, s40, %d" % (rr * 256))
        e("v_add_u32 v6, s42, v1")
        e("v_lshlrev_b32 v%d, 4, v6" % (UR_ + rr))
        e("v_mul_u32_u24 v7, 3277, v6")
        e("v_lshrrev_b32 v7, 16, v7")
        e("v_mul_u32_u24 v8, 20, v7")
        e("v_sub_u32 v8, v6, v8")
        e("v_mul_lo_u32 v7, v7, s41")
        e("v_lshl_add_u32 v%d, v8, 4, v7" % (UG + rr))
    e("v_lshlrev_b32 v6, 8, v3")
    e("v_add_u32 v6, s7, v6")
    e("v_cvt_f32_u32 v6, v6")
    e("v_mul_f32 v6, 0x3a000000, v6")
    e("v_cvt_f32_u32 v7, v2")
    e("v_add_f32 v8, 0x41800000, v7")
    for tau in range(2):
        for j in range(8):
            cj = ((j & 3) + 16 * (j >> 2)) / 32.0
            import struct
            lit = struct.unpack("<I", struct.pack("<f", cj))[0]
            e("v_add_f32 v9, 0x%x, v6" % lit)
            e("v_mul_f32 v9, v9, v%d" % (7 + tau))
            e("v_cos_f32 v%d, v9" % (128 + j))
            e("v_sin_f32 v%d, v9" % (136 + j))
        e("s_nop 0")
        for k in range(4):
            e("v_cvt_pk_bf16_f32 v%d, v%d, v%d" % (TW + tau * 4 + k, 128 + 2 * k, 128 + 2 * k + 1))
            e("v_cvt_pk_bf16_f32 v%d, v%d, v%d" % (TW + 8 + tau * 4 + k, 136 + 2 * k, 136 + 2 * k + 1))
        for k in range(4):
            e("v_xor_b32 v%d, 0x80008000, v%d" % (TW + 16 + tau * 4 + k, TW + tau * 4 + k))
    for i in range(32):
        e("v_mov_b32 v%d, 0" % (ZA + i))
    e("s_waitcnt lgkmcnt(0)")
    stamp(e, opt, 2)
    srd(e, 24, 38, WS_END)

    def b_reads(c, ks, s):
        slot = c % 4
        r = []
        for mu in range(2):
            r.append("ds_read_b128 %s, v%d offset:%d" % (vr(bx(s, mu)), XB + ks, slot * 16384 + mu * 2048))
        for T in range(3):
            r.append("ds_read_b128 %s, v%d offset:%d" % (vr(bh(s, T)), HB + ks, slot * 6144 + T * 2048))
        return r

    def b_mfma(s):
        m = []
        for T in range(3):
            for mu in range(2):
                m.append("v_mfma_f32_16x16x32_bf16 %s, %s, %s, %s" % (vr(za(mu, T)), vr(bx(s, mu)), vr(bh(s, T)), vr(za(mu, T))))
        for mu in range(2):
            m.append("v_mfma_f32_16x16x32_bf16 %s, %s, %s, %s" % (vr(GA + 4 * mu), vr(bx(s, mu)), vr(bx(s, mu)), vr(GA + 4 * mu)))
        return m

    if PF and opt.get("sw"):
        for p in range(opt.get("np", 1)):
            e("s_waitcnt vmcnt(%d)" % (NPF0 - 1))
            if p == 0: stamp(e, opt, 4)
            e("s_barrier")
            e(pf_one())
        e("s_waitcnt vmcnt(%d)" % (NPF0 - 1))
    stamp(e, opt, 5)
    e("s_barrier")
    stamp(e, opt, 6)
    if PF:
        for _ in range(opt.get("npf1", 2)):
            if pfq: e(pf_one())
    if opt.get("pfonly"):
        while pfq:
            e("s_barrier")
            e(pf_one())
        e("s_endpgm")
    for r in b_reads(0, 0, 0):
        e(r)
    e("s_waitcnt lgkmcnt(0)")
    for c in range(NCH):
        for l in interleave(b_mfma(0), b_reads(c, 1, 1), per=2):
            e(l)
        e("s_waitcnt lgkmcnt(0)")
        if c < NCH - 1:
            if PF and opt.get("sw"):
                need = min(9, c + opt.get("swn", 3))
                e("s_waitcnt vmcnt(%d)" % max(0, (10 - len(pfq)) - 1 - need))
            e("s_barrier")
            oth = b_reads(c + 1, 0, 0)
            if PF and pfq:
                oth = [pf_one()] + oth
            for l in interleave(b_mfma(1), oth, per=2):
                e(l)
            e("s_waitcnt lgkmcnt(0)")
            if c == 3: stamp(e, opt, 7)
            if c == 6: stamp(e, opt, 8)
        else:
            for l in b_mfma(1):
                e(l)
    stamp(e, opt, 9)
    if opt.get("bprio", 1):
        e("s_setprio %d" % opt.get("bprio", 1))
    e("s_lshl_b32 s40, s4, 8")
    e("s_add_u32 s40, s40, %d" % ST_LDS)
    e("v_lshlrev_b32 v6, 2, v2")
    e("v_add_u32 v6, s40, v6")
    e("v_lshlrev_b32 v7, 4, v3")
    e("v_add_u32 v7, s40, v7")
    e("s_mov_b32 s58, 0xaaaaaaaa")
    e("s_mov_b32 s59, 0xaaaaaaaa")
    e("s_mov_b32 s60, 0xcccccccc")
    e("s_mov_b32 s61, 0xcccccccc")
    e("s_nop 2")
    for mu in range(2):
        g = GA + 4 * mu
        e("v_cndmask_b32_e64 v8, v%d, v%d, s[58:59]" % (g, g + 1))
        e("v_cndmask_b32_e64 v9, v%d, v%d, s[58:59]" % (g + 2, g + 3))
        e("v_cndmask_b32_e64 v%d, v8, v9, s[60:61]" % (10 + mu))
    e("s_mov_b32 exec_lo, 0x00f0000f")
    e("s_mov_b32 exec_hi, 0xf0000f00")
    for mu in range(2):
        e("ds_write_b32 v6, v%d offset:%d" % (10 + mu, 128 + mu * 64))
    e("s_mov_b32 exec_lo, 0x00100010")
    e("s_mov_b32 exec_hi, 0x00100010")
    for mu in range(2):
        e("ds_write_b128 v7, %s offset:%d" % (vr(za(mu, 2)), mu * 64))
    e("s_mov_b64 exec, -1")
    e("s_waitcnt lgkmcnt(0)")
    e("s_barrier")
    stamp(e, opt, 10)
    SUM = 48
    SQ = 56
    for mu in range(2):
        e("ds_read_b128 %s, v7 offset:%d" % (vr(SUM + 4 * mu), mu * 64))
        e("ds_read_b128 %s, v7 offset:%d" % (vr(SQ + 4 * mu), 128 + mu * 64))
    e("s_mov_b32 s40, 0x3acccccd")
    e("s_mov_b32 s41, 0x3727c5ac")
    e("s_waitcnt lgkmcnt(0)")
    for k in range(8):
        e("v_mul_f32 v%d, s40, v%d" % (SUM + k, SUM + k))
        e("v_mul_f32 v%d, s40, v%d" % (SQ + k, SQ + k))
        e("v_fma_f32 v%d, -v%d, v%d, v%d" % (SQ + k, SUM + k, SUM + k, SQ + k))
        e("v_add_f32 v%d, s41, v%d" % (SQ + k, SQ + k))
        e("v_rsq_f32 v%d, v%d" % (SQ + k, SQ + k))
    e("s_nop 0")
    ZF = 64
    for T in range(3):
        for mu in range(2):
            for hh in range(2):
                a = za(mu, T) + 2 * hh
                e("v_pk_mul_f32 %s, %s, %s" % (vr(a, 2), vr(a, 2), vr(SQ + 4 * mu + 2 * hh, 2)))
        for mu in range(2):
            for hh in range(2):
                a = za(mu, T) + 2 * hh
                e("v_cvt_pk_bf16_f32 v%d, v%d, v%d" % (ZF + 4 * T + 2 * mu + hh, a, a + 1))
    e("s_nop 1")
    def ur(t): return 16 + 4 * t
    def vv(t): return 24 + 4 * t
    def pp(t): return 32 + 4 * t
    def qq(t): return 40 + 4 * t
    def C(t): return TW + 4 * t
    def S(t): return TW + 8 + 4 * t
    def NC(t): return TW + 16 + 4 * t
    M = "v_mfma_f32_16x16x32_bf16 %s, %s, %s, %s"
    for t in range(2):
        e(M % (vr(ur(t)), vr(C(t)), vr(ZF), "0"))
        e(M % (vr(vv(t)), vr(S(t)), vr(ZF), "0"))
        e(M % (vr(pp(t)), vr(C(t)), vr(ZF + 8), "0"))
        e(M % (vr(qq(t)), vr(S(t)), vr(ZF + 8), "0"))
    for t in range(2):
        e(M % (vr(ur(t)), vr(S(t)), vr(ZF + 4), vr(ur(t))))
        e(M % (vr(vv(t)), vr(NC(t)), vr(ZF + 4), vr(vv(t))))
    e("s_mul_i32 s40, s5, 320")
    e("s_mul_i32 s41, s6, 20")
    e("s_add_u32 s40, s40, s41")
    e("s_lshl_b32 s40, s40, 4")
    e("s_add_u32 s40, s40, 0x%x" % WS_U)
    e("s_nop 4")
    OU = 128
    for t in range(2):
        for i in range(4):
            e("v_add_f32_dpp v%d, v%d, v%d row_shl:8 row_mask:0xf bank_mask:0xf bound_ctrl:0" % (48 + 8 * t + i, qq(t) + i, pp(t) + i))
            e("v_subrev_f32_dpp v%d, v%d, v%d row_shl:8 row_mask:0xf bank_mask:0xf bound_ctrl:0" % (52 + 8 * t + i, pp(t) + i, qq(t) + i))
    for t in range(2):
        for i in range(4):
            e("v_cvt_pk_bf16_f32 v%d, v%d, v%d" % (OU + 4 * t + i, ur(t) + i, vv(t) + i))
    for t in range(2):
        for i in range(4):
            e("ds_write_b32 v%d, v%d offset:%d" % (UW, OU + 4 * t + i, (16 * t + i) * 320))
    for t in range(2):
        for i in range(4):
            e("v_cvt_pk_bf16_f32 v%d, v%d, v%d" % (OU + 8 + 4 * t + i, 48 + 8 * t + i, 52 + 8 * t + i))
    e("s_mov_b32 exec_lo, 0x000f000f")
    e("s_mov_b32 exec_hi, 0x000f000f")
    for t in range(2):
        for i in range(4):
            e("ds_write_b32 v%d, v%d offset:%d" % (UW, OU + 8 + 4 * t + i, (16 * t + i) * 320 + 256))
    e("s_mov_b64 exec, -1")
    e("s_waitcnt lgkmcnt(0)")
    e("s_barrier")
    stamp(e, opt, 11)
    e("s_cmp_ge_u32 s4, 2")
    e("ds_read_b128 v[16:19], v%d" % UR_)
    e("ds_read_b128 v[20:23], v%d" % (UR_ + 1))
    e("s_cbranch_scc1 L1_B2")
    e("ds_read_b128 v[24:27], v%d" % (UR_ + 2))
    e("s_waitcnt lgkmcnt(0)")
    e("buffer_store_dwordx4 v[24:27], v%d, s[24:27], s40 offen%s" % (UG + 2, opt.get("ust", "")))
    e("L1_B2:")
    e("s_waitcnt lgkmcnt(0)")
    e("buffer_store_dwordx4 v[16:19], v%d, s[24:27], s40 offen%s" % (UG, opt.get("ust", "")))
    e("buffer_store_dwordx4 v[20:23], v%d, s[24:27], s40 offen%s" % (UG + 1, opt.get("ust", "")))
    stamp(e, opt, 12)
    prof_out(e, opt, 0, 12, 3, 24, vb=160)
    e("s_endpgm")

    e("L1_L:")
    if opt.get("lprio"):
        e("s_setprio %d" % opt["lprio"])
    VX = 112
    VW = 116
    VH = 119
    VH2 = 120
    VW2 = 125
    if opt.get("ls7"):
        e(opt["ls7"])
    e("v_lshrrev_b32 v6, 3, v1")
    e("v_and_b32 v7, 7, v1")
    e("v_xor_b32 v8, v7, v3")
    e("v_lshlrev_b32 v8, 4, v8")
    XS = opt.get("xs", 81920)
    e("s_mov_b32 s40, %d" % XS)
    e("v_mul_lo_u32 v9, v6, s40")
    e("v_add_u32 v9, v9, v8")
    e("s_mul_i32 s41, s7, %d" % opt.get("xr", 1280))
    for q in range(4):
        e("s_add_u32 s42, s41, %d" % (q * 8 * XS - q * 1024))
        if q % 2 == 0:
            e("v_add_u32 v%d, s42, v9" % (VX + q))
        else:
            e("v_xor_b32 v10, 64, v9")
            e("v_add_u32 v%d, s42, v10" % (VX + q))
    e("s_mul_i32 s41, s4, %d" % (16 * 3072))
    e("s_mul_i32 s42, s6, 192")
    e("s_add_u32 s41, s41, s42")
    for i in range(3):
        e("v_add_u32 v10, %d, v1" % (64 * i))
        e("v_mul_u32_u24 v11, 171, v10")
        e("v_lshrrev_b32 v11, 11, v11")
        e("v_mul_u32_u24 v12, 12, v11")
        e("v_sub_u32 v12, v10, v12")
        e("v_lshrrev_b32 v13, 3, v11")
        e("v_lshlrev_b32 v13, 1, v13")
        e("v_xor_b32 v12, v12, v13")
        e("v_mul_u32_u24 v11, 3072, v11")
        e("v_lshl_add_u32 v11, v12, 4, v11")
        e("s_sub_u32 s42, s41, %d" % (i * 1024))
        e("v_add_u32 v%d, s42, v11" % (VW + i))
    e("s_and_b32 s41, s4, 1")
    e("s_mul_i32 s42, s6, 20")
    e("s_lshl_b32 s43, s41, 3")
    e("s_add_u32 s43, s43, s42")
    e("v_add_u32 v10, s43, v6")
    e("v_mov_b32 v11, 320")
    e("v_cmp_eq_u32 vcc, 0, v10")
    e("s_lshl_b32 s43, s41, 6")
    e("v_xor_b32 v12, s43, v8")
    e("v_cndmask_b32 v10, v10, v11, vcc")
    e("v_mul_u32_u24 v10, 1280, v10")
    e("v_add_u32 v%d, v10, v12" % VH)
    e("s_add_u32 s43, s42, 16")
    e("v_add_u32 v10, s43, v6")
    e("v_and_b32 v10, 0x1ff, v10")
    e("s_cmp_eq_u32 s4, 1")
    e("s_cselect_b32 s43, 0, 1280")
    e("v_mul_lo_u32 v10, v10, s43")
    e("s_lshl_b32 s43, s4, 1")
    e("v_add_u32 v11, s43, v3")
    e("v_and_b32 v11, 7, v11")
    e("v_xor_b32 v11, v11, v7")
    e("v_lshl_add_u32 v%d, v11, 4, v10" % VH2)
    e("s_lshl_b32 s50, s4, 12")
    e("s_mul_i32 s51, s4, 3072")
    e("s_add_u32 s51, s51, %d" % W1_LDS)
    e("s_lshl_b32 s52, s4, 10")
    e("s_add_u32 s52, s52, %d" % H_LDS)
    e("s_lshl_b32 s53, s4, 9")
    e("s_add_u32 s53, s53, %d" % (H_LDS + 4096))
    stamp(e, opt, 13)
    e("s_waitcnt lgkmcnt(0)")
    stamp(e, opt, 2)
    srd(e, 8, 28, 2048 * 1280)
    srd(e, 12, 34, 640 * 3072)
    e("s_cmp_ge_u32 s4, 2")
    e("s_cselect_b32 s16, s32, s30")
    e("s_cselect_b32 s17, s33, s31")
    e("s_mov_b32 s18, %d" % (640 * 1280))
    e("s_mov_b32 s19, 0x00020000")
    srd(e, 20, 36, 1536 * 1280)
    srd(e, 24, 38, WS_END2 if opt.get("w2l") else WS_END)

    if opt.get("rot3"):
        rot_calc(e, opt)
    elif opt.get("rot"):
        e(opt["rot"])
    else:
        e("s_mov_b32 s62, 0")
    def dma(c):
        slot = c % 4
        r = []
        pre = "s_add_u32 s63, s62, %d\ns_cmp_ge_u32 s63, 10\ns_cselect_b32 s54, 10, 0\ns_sub_u32 s63, s63, s54\ns_lshl_b32 s54, s63, 7\ns_mul_i32 s55, s63, 196608\n" % c
        r.append(pre + "s_add_u32 m0, s50, %d\ns_nop 0\nbuffer_load_dwordx4 v%d, s[8:11], s54 offen lds" % (slot * 16384, VX))
        for q in range(1, 4):
            r.append("buffer_load_dwordx4 v%d, s[8:11], s54 offen offset:%d lds" % (VX + q, q * 1024))
        r.append("s_add_u32 m0, s51, %d\ns_nop 0\nbuffer_load_dwordx4 v%d, s[12:15], s55 offen lds" % (slot * 12288, VW))
        for i in range(1, 3):
            r.append("buffer_load_dwordx4 v%d, s[12:15], s55 offen offset:%d lds" % (VW + i, i * 1024))
        r.append("s_add_u32 m0, s52, %d\ns_nop 0\nbuffer_load_dwordx4 v%d, s[16:19], s54 offen lds" % (slot * 6144, VH))
        r.append("s_add_u32 m0, s53, %d\ns_mov_b32 exec_hi, 0\nbuffer_load_dwordx4 v%d, s[16:19], s54 offen lds\ns_mov_b32 exec_hi, -1" % (slot * 6144, VH2))
        return r

    issued = []
    queue = []
    if opt.get("nch"):
        NCH = opt["nch"]
    skip = opt.get("skip", [])
    for c in range(NCH):
        for li, l in enumerate(dma(c)):
            if li in skip:
                l = "\n".join(x for x in l.split("\n") if not x.startswith("buffer_load"))
                if l: e_skip = l
                queue.append((c, -1 if c < 4 else c - 3, l + "\ns_nop 0", True))
                continue
            queue.append((c, -1 if c < 4 else c - 3, l, False))
    def take(pos, budget):
        out = []
        n = 0
        while queue and queue[0][1] <= pos and n < budget:
            c, _, t, sk = queue.pop(0)
            out.append(t)
            if not sk:
                issued.append(c)
                n += 1
        return out
    def allowed_after(c):
        last = max(i for i, t in enumerate(issued) if t <= c)
        return len(issued) - 1 - last
    SPF = opt.get("spf", 0)
    spfq = list(range(10))
    def spf_one():
        spfq.pop(0)
        r = []
        for jj in range(4):
            r.append("s_buffer_load_dword s31, s[8:11], s28 offset:%d" % (jj * 81920))
        for t in range(6):
            r.append("s_buffer_load_dword s31, s[12:15], s29 offset:%d" % (t * 128))
            if opt.get("s64"):
                r.append("s_buffer_load_dword s31, s[12:15], s29 offset:%d" % (t * 128 + 64))
        for t in range(3):
            r.append("s_buffer_load_dword s31, s[16:19], s30 offset:%d" % (t * 1280))
        if opt.get("s64"):
            for jj in range(4):
                r.append("s_buffer_load_dword s31, s[8:11], s28 offset:%d" % (jj * 81920 + 64))
            for t in range(3):
                r.append("s_buffer_load_dword s31, s[16:19], s30 offset:%d" % (t * 1280 + 64))
        r.append("s_add_u32 s28, s28, 128\ns_add_u32 s29, s29, 196608\ns_add_u32 s30, s30, 128")
        return r
    if SPF:
        e("s_lshr_b32 s40, s2, 5")
        e("s_and_b32 s41, s40, 1")
        e("s_lshl_b32 s41, s41, 4")
        e("s_lshl_b32 s42, s4, 2")
        e("s_add_u32 s41, s41, s42")
        e("s_lshl_b32 s41, s41, 6")
        e("s_lshl_b32 s42, s5, 2")
        e("s_add_u32 s41, s41, s42")
        e("s_lshr_b32 s40, s40, 1")
        e("s_add_u32 s41, s41, s40")
        e("s_mul_i32 s28, s41, 1280")
        e("s_lshr_b32 s40, s2, 3")
        e("s_lshl_b32 s41, s40, 1")
        e("s_lshr_b32 s42, s4, 1")
        e("s_add_u32 s41, s41, s42")
        e("s_mul_i32 s41, s41, 3072")
        e("s_and_b32 s42, s2, 1")
        e("s_mul_i32 s43, s42, 1536")
        e("s_add_u32 s41, s41, s43")
        e("s_and_b32 s43, s4, 1")
        e("s_mul_i32 s29, s43, 768")
        e("s_add_u32 s29, s29, s41")
        e("s_mul_i32 s42, s42, 160")
        e("s_mul_i32 s40, s40, 5")
        e("s_add_u32 s42, s42, s40")
        e("s_mul_i32 s43, s43, 3")
        e("s_add_u32 s42, s42, s43")
        e("s_mul_i32 s30, s42, 1280")
        for _ in range(SPF):
            for l in spf_one():
                e(l)
        e("s_waitcnt lgkmcnt(0)")
        stamp(e, opt, 13)
        if opt.get("spb"):
            e("s_barrier")
    if PF:
        e("s_barrier")
    for l in take(-1, 9):
        e(l)
    stamp(e, opt, 3)
    if PF:
        for _ in range(opt.get("np", 1) - 1):
            e("s_barrier")
            for l in take(-1, 9):
                e(l)
    for l in take(-1, opt.get("lpre", 18) - 9 * (opt.get("np", 1) if PF else 1)):
        e(l)
    stamp(e, opt, 4)
    W2L = opt.get("w2l", 0)
    if W2L:
        e("s_lshr_b32 s43, s2, 3")
        e("s_cmp_ge_u32 s43, 30")
        e("s_cselect_b32 s47, 30, 0")
        e("s_sub_u32 s43, s43, s47")
        e("s_lshl_b32 s48, s43, 4")
        e("s_lshl_b32 s47, s4, 2")
        e("s_add_u32 s48, s48, s47")
        e("s_and_b32 s49, s2, 1")
        e("s_mul_i32 s49, s49, 640")
        e("s_and_b32 s47, s2, 7")
        e("s_mul_i32 s47, s47, 0x%x" % W2L_SZ)
        e("s_add_u32 s47, s47, 0x%x" % WS_W2L)
        e("v_lshrrev_b32 v10, 2, v1")
        e("v_mul_u32_u24 v10, 1280, v10")
        e("v_and_b32 v11, 3, v1")
        e("v_lshl_add_u32 v%d, v11, 4, v10" % VW2)
        e("s_lshl_b32 s56, s4, 11")
        e("s_add_u32 s59, s56, %d" % (W1_LDS + 2 * 12288))
        e("s_add_u32 s56, s56, %d" % W2S_LDS)
        e("s_lshl_b32 s57, s4, 12")
        e("s_add_u32 s57, s57, %d" % (X_LDS + 2 * 16384))
        e("s_add_u32 s58, s57, 2048")
        e("v_lshrrev_b32 v8, 2, v2")
        e("v_lshl_add_u32 v8, v3, 2, v8")
        e("v_lshlrev_b32 v8, 6, v8")
        e("v_and_b32 v9, 3, v2")
        e("v_lshl_add_u32 v8, v9, 3, v8")
        for r in range(4):
            e("v_add_u32 v%d, s%d, v8" % (12 + r, 56 + r))
        e("v_lshlrev_b32 v9, 4, v1")
    else:
        e("s_cmp_ge_u32 s2, 240")
        e("s_cselect_b32 s43, 240, 0")
        e("s_sub_u32 s43, s2, s43")
        e("s_mul_i32 s47, s43, 1366")
        e("s_lshr_b32 s47, s47, 16")
        e("s_mul_i32 s48, s47, 48")
        e("s_sub_u32 s48, s43, s48")
        e("v_lshrrev_b32 v10, 2, v1")
        e("v_mul_u32_u24 v10, 1280, v10")
        e("v_and_b32 v11, 3, v1")
        e("v_lshl_add_u32 v10, v11, 4, v10")
        e("s_mul_i32 s43, s48, %d" % (32 * 1280))
        e("s_lshl_b32 s49, s47, 8")
        e("s_add_u32 s43, s43, s49")
        e("s_lshl_b32 s49, s4, 6")
        e("s_add_u32 s43, s43, s49")
        e("v_add_u32 v%d, s43, v10" % VW2)
        e("s_lshl_b32 s56, s4, 11")
        e("s_add_u32 s56, s56, %d" % W2S_LDS)
        e("s_mov_b32 s57, %d" % (16 * 1280 - 1024))
        e("v_lshrrev_b32 v8, 2, v2")
        e("v_lshl_add_u32 v8, v3, 2, v8")
        e("v_lshlrev_b32 v8, 6, v8")
        e("v_and_b32 v9, 3, v2")
        e("v_lshl_add_u32 v8, v9, 3, v8")
        e("v_add_u32 v8, s56, v8")
        e("v_lshlrev_b32 v9, 4, v1")
        e("s_lshl_b32 s40, s47, 3")
        e("s_lshl_b32 s41, s4, 1")
        e("s_add_u32 s40, s40, s41")
        e("s_mul_i32 s40, s40, 48")
        e("s_add_u32 s40, s40, s48")
        e("s_lshl_b32 s40, s40, 10")
        e("s_add_u32 s40, s40, 0x%x" % WS_W2T)
        e("s_add_u32 s41, s40, %d" % (48 * 1024))
    stamp(e, opt, 5)
    e("s_waitcnt vmcnt(%d)" % allowed_after(0))
    e("s_barrier")
    stamp(e, opt, 6)
    W2F = 128
    w2pos = opt.get("w2pos", NCH - 3)
    for c in range(NCH - 1):
        for l in take(c, opt.get("lb0", 9) if c == 0 else opt.get("lb", 12)):
            e(l)
        if SPF and spfq:
            for l in spf_one():
                e(l)
        if c == w2pos and W2L:
            assert not queue and c + 3 == NCH
            for r in range(4):
                e("s_add_u32 s40, s48, %d" % r)
                e("s_mul_i32 s41, s40, 6554")
                e("s_lshr_b32 s41, s41, 16")
                e("s_mul_i32 s42, s41, 10")
                e("s_sub_u32 s42, s40, s42")
                e("s_mul_i32 s43, s41, 40960")
                e("s_lshl_b32 s44, s42, 6")
                e("s_add_u32 s43, s43, s44")
                e("s_add_u32 s43, s43, s49")
                e("s_add_u32 s44, s43, %d" % (16 * 1280 - 1024))
                e("s_mov_b32 m0, s%d" % (56 + r))
                e("s_mul_i32 s42, s42, 96")
                e("buffer_load_dwordx4 v%d, s[20:23], s43 offen lds" % VW2)
                e("buffer_load_dwordx4 v%d, s[20:23], s44 offen offset:1024 lds" % VW2)
                e("s_add_u32 s42, s42, s41")
                e("s_lshl_b32 s42, s42, 10")
                e("s_add_u32 s%d, s42, s47" % (64 + r))
            issued.extend([99] * 8)
        elif c == w2pos:
            assert not queue
            e("s_mov_b32 m0, s56")
            e("s_nop 0")
            e("buffer_load_dwordx4 v%d, s[20:23], 0 offen lds" % VW2)
            e("buffer_load_dwordx4 v%d, s[20:23], s57 offen offset:1024 lds" % VW2)
            issued.extend([99, 99])
        e("s_waitcnt vmcnt(%d)" % allowed_after(c + 1))
        e("s_barrier")
        if c == 0: stamp(e, opt, 10)
        if c == 1: stamp(e, opt, 12)
        if c == (3 if NCH == 10 else 9): stamp(e, opt, 7)
        if c == (6 if NCH == 10 else 14): stamp(e, opt, 8)
    assert not queue
    stamp(e, opt, 9)
    if W2L:
        e("s_barrier")
        e("s_waitcnt vmcnt(0)")
        for r in range(4):
            for t in range(2):
                for hh in range(2):
                    e("ds_read_b64_tr_b16 %s, v%d offset:%d" % (vr(W2F + 8 * r + 4 * t + 2 * hh, 2), 12 + r, hh * 1024 + t * 32))
            e("s_add_u32 s40, s%d, %d" % (64 + r, 48 * 1024))
            e("s_waitcnt lgkmcnt(0)")
            e("buffer_store_dwordx4 %s, v9, s[24:27], s%d offen%s" % (vr(W2F + 8 * r), 64 + r, opt.get("wst", "")))
            e("buffer_store_dwordx4 %s, v9, s[24:27], s40 offen%s" % (vr(W2F + 8 * r + 4), opt.get("wst", "")))
    else:
        e("s_waitcnt vmcnt(0)")
        for t in range(2):
            for hh in range(2):
                e("ds_read_b64_tr_b16 %s, v8 offset:%d" % (vr(W2F + 4 * t + 2 * hh, 2), hh * 1024 + t * 32))
        e("s_waitcnt lgkmcnt(0)")
        e("buffer_store_dwordx4 %s, v9, s[24:27], s40 offen%s" % (vr(W2F), opt.get("wst", "")))
        e("buffer_store_dwordx4 %s, v9, s[24:27], s41 offen%s" % (vr(W2F + 4), opt.get("wst", "")))
    stamp(e, opt, 11)
    prof_out(e, opt, 0, 12, 3, 24, vb=160)
    e("L1_END:")
    e("s_endpgm")
    return e.text()


HEAD = """; Kernarg layout for this problem (88 bytes, ptrs only, base s[0:1]):
"""


def kernel_wrap(name, body, vgpr=256, sgpr=102, accum=None):
    accum = accum or vgpr
    txt = ".globl %s\n.p2align 8\n.type %s,@function\n%s:\n%s" % (name, name, name, body)
    desc = """.p2align 6
.amdhsa_kernel %s
  .amdhsa_next_free_vgpr %d
  .amdhsa_next_free_sgpr %d
  .amdhsa_accum_offset %d
  .amdhsa_group_segment_fixed_size 0
  .amdhsa_kernarg_size 88
  .amdhsa_user_sgpr_count 2
  .amdhsa_user_sgpr_kernarg_segment_ptr 1
  .amdhsa_system_sgpr_workgroup_id_x 1
.end_amdhsa_kernel
""" % (name, vgpr, sgpr, accum)
    return txt, desc


DEF = {"hst": "", "rbm": 1, "wst": " sc1", "ust": " sc1", "pre2": 2, "hb2": 5, "yb2": 4, "xc2": 9, "pf": 0, "lprio": 3, "lpre": 18, "lb0": 9, "lb": 12, "rot3": [0, 0, 3, 5]}


def build(opt=None, only_l1=False):
    global PROF_ON
    o = dict(DEF)
    o.update(opt or {})
    opt = o
    PROF_ON = bool(opt.get("prof"))
    k1 = KN + "_kernel"
    k2 = "fnet_l2_kernel"
    launches = ["; @launch kernel=%s grid=(256,1,1) block=(768,1,1) lds=%d" % (k1, L1_LDS)]
    t1, d1 = kernel_wrap(k1, gen_l1(opt), vgpr=168)
    txt = [t1]
    desc = [d1]
    if not only_l1:
        from gen2 import gen_l2, L2_LDS, L2_BLOCK, L2_VGPR, L2_ACC
        launches.append("; @launch kernel=%s grid=(256,1,1) block=(%d,1,1) lds=%d" % (k2, L2_BLOCK, L2_LDS))
        if opt.get("dup2"):
            launches.append(launches[-1])
        t2, d2 = kernel_wrap(k2, gen_l2(opt), vgpr=L2_VGPR, accum=L2_ACC)
        txt.append(t2)
        desc.append(d2)
    s = HEAD + "\n".join(launches) + "\n.amdgcn_target \"amdgcn-amd-amdhsa--gfx950\"\n.text\n" + "\n".join(txt)
    s += ".section .rodata,\"a\"\n" + "".join(desc)
    return s


if __name__ == "__main__":
    only = len(sys.argv) > 1 and sys.argv[1] == "l1"
    s = build({}, only_l1=only)
    out = "cdna_kernels/%s.s" % KN if not only else "l1.s"
    open(out, "w").write(s)
    print("wrote", out, len(s))
```

```python
from gen import E, vr, srd, interleave, stamp, prof_out, WS_H, WS_U, WS_W2T, WS_END, WS_W2L, W2L_SZ, WS_END2

NS = 6
SLOT = 20480
U_LDS = NS * SLOT
L2_LDS = U_LDS + 20480
L2_BLOCK = 256
L2_VGPR = 512
L2_ACC = 256


def ar(b, n=4):
    return "a[%d:%d]" % (b, b + n - 1)


def gen_l2(opt):
    e = E()
    NCH = 12
    M = "v_mfma_f32_16x16x32_bf16 %s, %s, %s, %s"
    e("s_cmp_ge_u32 s2, 256")
    e("s_cbranch_scc1 L2_END")
    stamp(e, opt, 0, real=True)
    stamp(e, opt, 1)
    e("s_load_dwordx2 s[28:29], s[0:1], 0")
    e("s_load_dwordx2 s[30:31], s[0:1], 64")
    e("s_load_dwordx2 s[32:33], s[0:1], 80")
    e("v_lshrrev_b32 v2, 6, v0")
    e("v_and_b32 v1, 63, v0")
    e("v_readfirstlane_b32 s3, v2")
    e("s_and_b32 s40, s2, 7")
    e("s_lshr_b32 s41, s2, 3")
    e("s_lshr_b32 s4, s40, 1")
    e("s_lshl_b32 s4, s4, 3")
    e("s_and_b32 s42, s41, 7")
    e("s_add_u32 s4, s4, s42")
    e("s_and_b32 s5, s40, 1")
    e("s_lshl_b32 s5, s5, 2")
    e("s_lshr_b32 s42, s41, 3")
    e("s_add_u32 s5, s5, s42")
    e("s_lshr_b32 s6, s3, 1")
    e("s_and_b32 s7, s3, 1")
    e("v_and_b32 v2, 15, v1")
    e("v_lshrrev_b32 v3, 4, v1")
    e("v_lshlrev_b32 v4, 4, v1")
    e("s_mul_i32 s35, s5, 80")
    e("s_sub_u32 s40, 640, s35")
    e("s_sub_u32 s41, 32, s4")
    e("s_and_b32 s41, s41, 31")
    e("s_cmp_eq_u32 s4, 0")
    e("s_cselect_b32 s42, 64, 63")
    e("s_cmp_ge_u32 s5, 4")
    e("s_cselect_b32 s34, -1, 1")
    e("s_cselect_b32 s35, s40, s35")
    e("s_cselect_b32 s36, s41, s4")
    e("s_cselect_b32 s37, s42, 0")
    e("v_mul_lo_u32 v5, v2, s34")
    e("v_mul_u32_u24 v6, 5120, v3")
    e("s_lshl_b32 s40, s34, 4")
    e("s_mov_b32 s41, s35")
    for n in range(5):
        e("v_add_u32 v7, s41, v5")
        if n == 0:
            e("v_cmp_ne_u32 vcc, 320, v7")
            e("s_nop 1")
            e("v_cndmask_b32 v7, 0, v7, vcc")
        e("v_lshl_add_u32 v%d, v7, 4, v6" % (8 + n))
        if n < 4:
            e("s_add_u32 s41, s41, s40")
    e("s_lshl_b32 s38, s36, 4")
    e("s_lshl_b32 s40, s3, 2")
    e("s_add_u32 s38, s38, s40")
    e("s_mul_i32 s38, s38, 5120")
    e("s_add_u32 s38, s38, 0x%x" % WS_U)
    if opt.get("w2l"):
        e("s_and_b32 s40, s5, 3")
        e("s_mul_i32 s40, s40, 5")
        e("s_and_b32 s43, s2, 7")
        e("s_mul_i32 s43, s43, 0x%x" % W2L_SZ)
        e("s_add_u32 s43, s43, 0x%x" % WS_W2L)
        e("s_add_u32 s41, s40, s3")
        e("s_mul_i32 s20, s41, 49152")
        e("s_add_u32 s20, s20, s43")
        e("s_add_u32 s41, s40, 4")
        e("s_mul_i32 s21, s41, 49152")
        e("s_lshl_b32 s41, s3, 10")
        e("s_add_u32 s21, s21, s41")
        e("s_add_u32 s21, s21, s43")
    else:
        e("s_mul_i32 s40, s5, 5")
        e("s_add_u32 s41, s40, s3")
        e("s_mul_i32 s20, s41, 49152")
        e("s_add_u32 s20, s20, 0x%x" % WS_W2T)
        e("s_add_u32 s41, s40, 4")
        e("s_mul_i32 s21, s41, 49152")
        e("s_lshl_b32 s41, s3, 10")
        e("s_add_u32 s21, s21, s41")
        e("s_add_u32 s21, s21, 0x%x" % WS_W2T)
    e("s_lshl_b32 s40, s6, 5")
    e("s_add_u32 s40, s40, s4")
    e("s_lshl_b32 s40, s40, 1")
    e("s_add_u32 s40, s40, s7")
    e("s_mul_i32 s22, s40, 49152")
    e("s_lshl_b32 s23, s3, 12")
    e("s_lshl_b32 s24, s3, 10")
    e("s_add_u32 s24, s24, 16384")
    e("s_mov_b32 s25, 0")
    if opt.get("krot2"):
        e(opt["krot2"])
    e("s_mov_b32 s26, s25")
    e("s_waitcnt lgkmcnt(0)")
    stamp(e, opt, 2)
    srd(e, 8, 32, WS_END2 if opt.get("w2l") else WS_END)
    srd(e, 12, 28, 2048 * 1280)
    srd(e, 16, 30, 2048 * 1280)

    HR = 0
    def hreg(c, q): return HR + (c % 7) * 16 + q * 4

    def dma_w(c):
        slot = c % NS
        r = []
        r.append("s_add_u32 s40, s20, s25\ns_add_u32 m0, s23, %d\ns_add_u32 s41, s21, s25" % (slot * SLOT))
        for q in range(4):
            r.append("buffer_load_dwordx4 v4, s[8:11], s40 offen offset:%d lds" % (q * 1024))
        r.append("s_add_u32 m0, s24, %d\ns_add_u32 s25, s25, 4096\nbuffer_load_dwordx4 v4, s[8:11], s41 offen lds" % (slot * SLOT))
        r.append("s_cmp_eq_u32 s25, 49152\ns_cselect_b32 s25, 0, s25")
        return r

    def ld_h(c):
        r = []
        r.append("s_add_u32 s42, s22, s26\ns_add_u32 s26, s26, 4096")
        for q in range(4):
            r.append("buffer_load_dwordx4 %s, v4, s[8:11], s42 offen offset:%d" % (ar(hreg(c, q)), q * 1024))
        r.append("s_cmp_eq_u32 s26, 49152\ns_cselect_b32 s26, 0, s26")
        return r

    e("s_lshl_b32 s40, s3, 10")
    e("s_add_u32 s40, s40, %d" % U_LDS)
    for n in range(5):
        e("s_add_u32 m0, s40, %d" % (n * 4096))
        e("s_nop 0")
        e("buffer_load_dwordx4 v%d, s[8:11], s38 offen lds" % (8 + n))
    stamp(e, opt, 3)
    PRE = opt.get("pre2", 2)
    YB = opt.get("yb2", 9)
    HB = opt.get("hb2", 6)
    issued = [-1] * 5
    queue = []
    for c in range(NCH):
        ew = -2 if c < NS else 2 * (c - NS) + 1
        eh = -2 if c < 7 else 2 * (c - 7) + 2
        for l in dma_w(c):
            queue.append((c, ew, l))
        for l in ld_h(c):
            queue.append((c, eh, l))
    def nl(t): return sum(1 for x in t.split("\n") if x.startswith("buffer_load"))
    def take(pos, budget, maxchunk=99):
        out = []
        n = 0
        while queue and queue[0][1] <= pos and queue[0][0] <= maxchunk:
            k = nl(queue[0][2])
            if n + k > budget and k > 0:
                break
            c, _, t = queue.pop(0)
            out.append(t)
            issued.extend([c] * k)
            n += k
        return out
    def allowed_after(c):
        last = max(i for i, t in enumerate(issued) if t <= c)
        return len(issued) - 1 - last
    for l in take(-2, 999, PRE - 1):
        e(l)
    stamp(e, opt, 4)
    AO = 16
    AY = 36
    FR = [56, 96]
    WQ = 136
    XP = 152
    VL = 14
    def fw(s, k, n): return FR[s] + (k * 5 + n) * 4

    e("s_lshl_b32 s40, s7, 5")
    e("s_add_u32 s40, s40, s6")
    e("v_lshlrev_b32 v5, 1, v2")
    e("v_add_u32 v5, s40, v5")
    e("v_mul_lo_u32 v5, v5, s34")
    e("v_add_u32 v5, s37, v5")
    e("v_and_b32 v5, 63, v5")
    e("v_cvt_f32_u32 v5, v5")
    e("v_mul_f32 v5, 0x3c800000, v5")
    e("v_lshlrev_b32 v6, 2, v3")
    e("v_cvt_f32_u32 v6, v6")
    import struct
    for kk in range(4):
        for q in range(4):
            lit = struct.unpack("<I", struct.pack("<f", float(16 * kk + q)))[0]
            e("v_add_f32 v7, 0x%x, v6" % lit)
            e("v_mul_f32 v7, v7, v5")
            e("v_cos_f32 v%d, v7" % (176 + q))
            e("v_sin_f32 v%d, v7" % (180 + q))
        e("s_nop 0")
        for q in range(4):
            e("v_cvt_pk_bf16_f32 v%d, v%d, -v%d" % (WQ + kk * 4 + q, 176 + q, 180 + q))
    for i in range(40):
        e("v_mov_b32 v%d, 0" % (AO + i))
    e("v_mov_b32 v%d, v4" % VL)
    e("v_add_u32 v%d, %d, v4" % (VL + 1, 3 * SLOT))
    e("v_add_u32 v13, %d, v4" % U_LDS)

    def w_reads(c, half, s):
        slot = c % NS
        r = []
        for k in range(2):
            for n in range(5):
                r.append("ds_read_b128 %s, v%d offset:%d" % (vr(fw(s, k, n)), VL + slot // 3, (slot % 3) * SLOT + n * 4096 + (2 * half + k) * 1024))
        return r

    def o_mfma(c, half, s):
        m = []
        for k in range(2):
            for n in range(5):
                m.append(M % (vr(AO + 4 * n), vr(fw(s, k, n)), ar(hreg(c, 2 * half + k)), vr(AO + 4 * n)))
        return m

    stamp(e, opt, 5)
    e("s_waitcnt vmcnt(%d)" % allowed_after(0))
    e("s_barrier")
    stamp(e, opt, 6)
    for kk in range(4):
        for n in range(5):
            e("ds_read_b128 %s, v13 offset:%d" % (vr(fw(kk // 2, kk % 2, n)), n * 4096 + kk * 1024))
    e("s_waitcnt lgkmcnt(10)")
    ym = []
    for kk in range(2):
        for n in range(5):
            ym.append(M % (vr(AY + 4 * n), vr(fw(0, kk, n)), vr(WQ + 4 * kk), vr(AY + 4 * n)))
    for l in interleave(ym, take(-1, YB // 2), per=1):
        e(l)
    e("s_waitcnt lgkmcnt(0)")
    ym = []
    for kk in range(2, 4):
        for n in range(5):
            ym.append(M % (vr(AY + 4 * n), vr(fw(1, kk - 2, n)), vr(WQ + 4 * kk), vr(AY + 4 * n)))
    for l in interleave(ym, w_reads(0, 0, 0) + take(-1, YB - YB // 2), per=2):
        e(l)
    e("s_waitcnt lgkmcnt(0)")

    stamp(e, opt, 7)
    def x_setup():
        r = []
        s = []
        s.append("s_lshl_b32 s43, s7, 10\ns_lshl_b32 s44, s6, 5\ns_add_u32 s43, s43, s44\ns_add_u32 s43, s43, s4\ns_mul_i32 s43, s43, 1280\ns_mul_i32 s44, s5, 160\ns_add_u32 s43, s43, s44")
        r += s
        for rr in range(3):
            r.append("v_add_u32 v184, %d, v1\nv_mul_u32_u24 v185, 205, v184\nv_lshrrev_b32 v185, 11, v185\nv_mul_u32_u24 v186, 10, v185\nv_sub_u32 v186, v184, v186" % (64 * rr))
            r.append("v_mul_u32_u24 v187, 0x14000, v185\nv_lshl_add_u32 v%d, v186, 4, v187\nv_mul_u32_u24 v187, 336, v185\nv_lshl_add_u32 v%d, v186, 5, v187" % (176 + rr, 180 + rr))
        for rr in range(3):
            if rr == 2:
                r.append("s_mov_b32 exec_hi, 0\nbuffer_load_dwordx4 %s, v%d, s[12:15], s43 offen\ns_mov_b32 exec_hi, -1" % (vr(XP + 4 * rr), 176 + rr))
            else:
                r.append("buffer_load_dwordx4 %s, v%d, s[12:15], s43 offen" % (vr(XP + 4 * rr), 176 + rr))
        return r

    for c in range(NCH):
        oth = w_reads(c, 1, 1) + take(2 * c, HB)
        for l in interleave(o_mfma(c, 0, 0), oth, per=2):
            e(l)
        e("s_waitcnt lgkmcnt(0)")
        if c < NCH - 1:
            e("s_waitcnt vmcnt(%d)" % min(63, allowed_after(c + 1)))
            e("s_barrier")
            oth = w_reads(c + 1, 0, 0) + take(2 * c + 1, HB)
            if c == opt.get("xc2", 7):
                oth = oth + x_setup()
                issued.extend([99] * 3)
            for l in interleave(o_mfma(c, 1, 1), oth, per=2):
                e(l)
            e("s_waitcnt lgkmcnt(0)")
            if c == 3: stamp(e, opt, 8)
            if c == 7: stamp(e, opt, 9)
        else:
            for l in o_mfma(c, 1, 1):
                e(l)
    assert not queue, queue
    stamp(e, opt, 10)
    e("s_cmp_eq_u32 s5, 0")
    e("s_cselect_b32 s44, 0xffff, 0")
    e("s_mov_b32 s45, 0")
    e("s_mov_b32 s40, 0xbfb8aa3b")
    e("v_mov_b32 v188, s40")
    e("v_mov_b32 v189, s40")
    e("v_mov_b32 v190, 1.0")
    e("v_mov_b32 v191, 1.0")
    e("v_cndmask_b32_e64 v%d, v%d, 0, s[44:45]" % (AY, AY))
    e("s_mul_i32 s46, s3, %d" % SLOT)
    e("v_mul_u32_u24 v5, 336, v2")
    e("v_lshl_add_u32 v5, v3, 4, v5")
    e("v_add_u32 v5, s46, v5")
    for rr in range(3):
        e("v_add_u32 v%d, s46, v%d" % (180 + rr, 180 + rr))
    Z = 56
    e("s_nop 1")
    for k in range(10):
        e("v_pk_mul_f32 %s, %s, v[188:189]" % (vr(Z + 2 * k, 2), vr(AO + 2 * k, 2)))
    for k in range(20):
        e("v_exp_f32 v%d, v%d" % (Z + k, Z + k))
    for k in range(10):
        e("v_pk_mul_f32 %s, %s, %s" % (vr(AY + 2 * k, 2), vr(AY + 2 * k, 2), vr(AO + 2 * k, 2)))
    for k in range(10):
        e("v_pk_add_f32 %s, %s, v[190:191]" % (vr(Z + 2 * k, 2), vr(Z + 2 * k, 2)))
    for k in range(20):
        e("v_rcp_f32 v%d, v%d" % (Z + k, Z + k))
    e("s_nop 0")
    for n in range(5):
        for hh in range(2):
            k = 2 * n + hh
            e("v_pk_mul_f32 %s, %s, %s" % (vr(AY + 2 * k, 2), vr(AY + 2 * k, 2), vr(Z + 2 * k, 2)))
        e("ds_write_b128 v5, %s offset:%d" % (vr(AY + 4 * n), n * 64))
    e("s_waitcnt lgkmcnt(0)")
    stamp(e, opt, 11)
    PB = 96
    for rr in range(3):
        e("ds_read_b128 %s, v%d" % (vr(PB + 8 * rr), 180 + rr))
        e("ds_read_b128 %s, v%d offset:16" % (vr(PB + 8 * rr + 4), 180 + rr))
    XU = 192
    e("s_waitcnt vmcnt(0)")
    for rr in range(3):
        for k in range(4):
            e("v_lshlrev_b32 v%d, 16, v%d" % (XU + 8 * rr + 2 * k, XP + 4 * rr + k))
            e("v_and_b32 v%d, 0xffff0000, v%d" % (XU + 8 * rr + 2 * k + 1, XP + 4 * rr + k))
    e("s_waitcnt lgkmcnt(0)")
    for rr in range(3):
        for k in range(4):
            e("v_pk_add_f32 %s, %s, %s" % (vr(XU + 8 * rr + 2 * k, 2), vr(XU + 8 * rr + 2 * k, 2), vr(PB + 8 * rr + 2 * k, 2)))
        for k in range(4):
            e("v_cvt_pk_bf16_f32 v%d, v%d, v%d" % (XP + 4 * rr + k, XU + 8 * rr + 2 * k, XU + 8 * rr + 2 * k + 1))
        if rr == 2:
            e("s_mov_b32 exec_hi, 0")
        e("buffer_store_dwordx4 %s, v%d, s[16:19], s43 offen" % (vr(XP + 4 * rr), 176 + rr))
    stamp(e, opt, 12)
    prof_out(e, opt, 1, 4, 3, 8)
    e("L2_END:")
    e("s_endpgm")
    return e.text()
```

```python
from gen import E, vr, srd, interleave, stamp, prof_out, WS_H, WS_U, WS_W2T, WS_END, WS_W2L, W2L_SZ, WS_END2

NS = 6
SLOT = 20480
U_LDS = NS * SLOT
L2_LDS = U_LDS + 20480
L2_BLOCK = 256
L2_VGPR = 512
L2_ACC = 256


def ar(b, n=4):
    return "a[%d:%d]" % (b, b + n - 1)


def gen_l2(opt):
    e = E()
    NCH = 12
    M = "v_mfma_f32_16x16x32_bf16 %s, %s, %s, %s"
    e("s_cmp_ge_u32 s2, 256")
    e("s_cbranch_scc1 L2_END")
    stamp(e, opt, 0, real=True)
    stamp(e, opt, 1)
    e("s_load_dwordx2 s[28:29], s[0:1], 0")
    e("s_load_dwordx2 s[30:31], s[0:1], 64")
    e("s_load_dwordx2 s[32:33], s[0:1], 80")
    e("v_lshrrev_b32 v2, 6, v0")
    e("v_and_b32 v1, 63, v0")
    e("v_readfirstlane_b32 s3, v2")
    e("s_and_b32 s40, s2, 7")
    e("s_lshr_b32 s41, s2, 3")
    e("s_lshr_b32 s4, s40, 1")
    e("s_lshl_b32 s4, s4, 3")
    e("s_and_b32 s42, s41, 7")
    e("s_add_u32 s4, s4, s42")
    e("s_and_b32 s5, s40, 1")
    e("s_lshl_b32 s5, s5, 2")
    e("s_lshr_b32 s42, s41, 3")
    e("s_add_u32 s5, s5, s42")
    e("s_lshr_b32 s6, s3, 1")
    e("s_and_b32 s7, s3, 1")
    e("v_and_b32 v2, 15, v1")
    e("v_lshrrev_b32 v3, 4, v1")
    e("v_lshlrev_b32 v4, 4, v1")
    e("s_mul_i32 s35, s5, 80")
    e("s_sub_u32 s40, 640, s35")
    e("s_sub_u32 s41, 32, s4")
    e("s_and_b32 s41, s41, 31")
    e("s_cmp_eq_u32 s4, 0")
    e("s_cselect_b32 s42, 64, 63")
    e("s_cmp_ge_u32 s5, 4")
    e("s_cselect_b32 s34, -1, 1")
    e("s_cselect_b32 s35, s40, s35")
    e("s_cselect_b32 s36, s41, s4")
    e("s_cselect_b32 s37, s42, 0")
    e("v_mul_lo_u32 v5, v2, s34")
    e("v_mul_u32_u24 v6, 5120, v3")
    e("s_lshl_b32 s40, s34, 4")
    e("s_mov_b32 s41, s35")
    for n in range(5):
        e("v_add_u32 v7, s41, v5")
        if n == 0:
            e("v_cmp_ne_u32 vcc, 320, v7")
            e("s_nop 1")
            e("v_cndmask_b32 v7, 0, v7, vcc")
        e("v_lshl_add_u32 v%d, v7, 4, v6" % (8 + n))
        if n < 4:
            e("s_add_u32 s41, s41, s40")
    e("s_lshl_b32 s38, s36, 4")
    e("s_lshl_b32 s40, s3, 2")
    e("s_add_u32 s38, s38, s40")
    e("s_mul_i32 s38, s38, 5120")
    e("s_add_u32 s38, s38, 0x%x" % WS_U)
    if opt.get("w2l"):
        e("s_and_b32 s40, s5, 3")
        e("s_mul_i32 s40, s40, 5")
        e("s_and_b32 s43, s2, 7")
        e("s_mul_i32 s43, s43, 0x%x" % W2L_SZ)
        e("s_add_u32 s43, s43, 0x%x" % WS_W2L)
        e("s_add_u32 s41, s40, s3")
        e("s_mul_i32 s20, s41, 49152")
        e("s_add_u32 s20, s20, s43")
        e("s_add_u32 s41, s40, 4")
        e("s_mul_i32 s21, s41, 49152")
        e("s_lshl_b32 s41, s3, 10")
        e("s_add_u32 s21, s21, s41")
        e("s_add_u32 s21, s21, s43")
    else:
        e("s_mul_i32 s40, s5, 5")
        e("s_add_u32 s41, s40, s3")
        e("s_mul_i32 s20, s41, 49152")
        e("s_add_u32 s20, s20, 0x%x" % WS_W2T)
        e("s_add_u32 s41, s40, 4")
        e("s_mul_i32 s21, s41, 49152")
        e("s_lshl_b32 s41, s3, 10")
        e("s_add_u32 s21, s21, s41")
        e("s_add_u32 s21, s21, 0x%x" % WS_W2T)
    e("s_lshl_b32 s40, s6, 5")
    e("s_add_u32 s40, s40, s4")
    e("s_lshl_b32 s40, s40, 1")
    e("s_add_u32 s40, s40, s7")
    e("s_mul_i32 s22, s40, 49152")
    e("s_lshl_b32 s23, s3, 12")
    e("s_lshl_b32 s24, s3, 10")
    e("s_add_u32 s24, s24, 16384")
    e("s_mov_b32 s25, 0")
    if opt.get("krot2"):
        e(opt["krot2"])
    e("s_mov_b32 s26, s25")
    e("s_waitcnt lgkmcnt(0)")
    stamp(e, opt, 2)
    srd(e, 8, 32, WS_END2 if opt.get("w2l") else WS_END)
    srd(e, 12, 28, 2048 * 1280)
    srd(e, 16, 30, 2048 * 1280)

    HR = 0
    def hreg(c, q): return HR + (c % 7) * 16 + q * 4

    def dma_w(c):
        slot = c % NS
        r = []
        r.append("s_add_u32 s40, s20, s25\ns_add_u32 m0, s23, %d\ns_add_u32 s41, s21, s25" % (slot * SLOT))
        for q in range(4):
            r.append("buffer_load_dwordx4 v4, s[8:11], s40 offen offset:%d lds" % (q * 1024))
        r.append("s_add_u32 m0, s24, %d\ns_add_u32 s25, s25, 4096\nbuffer_load_dwordx4 v4, s[8:11], s41 offen lds" % (slot * SLOT))
        r.append("s_cmp_eq_u32 s25, 49152\ns_cselect_b32 s25, 0, s25")
        return r

    def ld_h(c):
        r = []
        r.append("s_add_u32 s42, s22, s26\ns_add_u32 s26, s26, 4096")
        for q in range(4):
            r.append("buffer_load_dwordx4 %s, v4, s[8:11], s42 offen offset:%d" % (ar(hreg(c, q)), q * 1024))
        r.append("s_cmp_eq_u32 s26, 49152\ns_cselect_b32 s26, 0, s26")
        return r

    YL = opt.get("ylate", 0)
    e("s_lshl_b32 s39, s3, 10")
    e("s_add_u32 s39, s39, %d" % U_LDS)
    uload = ["s_add_u32 m0, s39, %d\ns_nop 0\nbuffer_load_dwordx4 v%d, s[8:11], s38 offen lds" % (n * 4096, 8 + n) for n in range(5)]
    if not YL:
        for l in uload:
            e(l)
    stamp(e, opt, 3)
    PRE = opt.get("pre2", 2)
    YB = opt.get("yb2", 9)
    HB = opt.get("hb2", 6)
    issued = [] if YL else [-1] * 5
    queue = []
    for c in range(NCH):
        ew = -2 if c < NS else 2 * (c - NS) + 1
        eh = -2 if c < 7 else 2 * (c - 7) + 2
        if YL and c == YL - opt.get("yuo", 0):
            for l in uload:
                queue.append((c, -2, l))
        for l in dma_w(c):
            queue.append((c, ew, l))
        for l in ld_h(c):
            queue.append((c, eh, l))
    def nl(t): return sum(1 for x in t.split("\n") if x.startswith("buffer_load"))
    def take(pos, budget, maxchunk=99):
        out = []
        n = 0
        while queue and queue[0][1] <= pos and queue[0][0] <= maxchunk:
            k = nl(queue[0][2])
            if n + k > budget and k > 0:
                break
            c, _, t = queue.pop(0)
            out.append(t)
            issued.extend([c] * k)
            n += k
        return out
    def allowed_after(c):
        last = max(i for i, t in enumerate(issued) if t <= c)
        return len(issued) - 1 - last
    for l in take(-2, 999, PRE - 1):
        e(l)
    stamp(e, opt, 4)
    AO = 16
    AY = 36
    FR = [56, 96]
    WQ = 136
    XP = 152
    VL = 14
    def fw(s, k, n): return FR[s] + (k * 5 + n) * 4

    e("s_lshl_b32 s40, s7, 5")
    e("s_add_u32 s40, s40, s6")
    e("v_lshlrev_b32 v5, 1, v2")
    e("v_add_u32 v5, s40, v5")
    e("v_mul_lo_u32 v5, v5, s34")
    e("v_add_u32 v5, s37, v5")
    e("v_and_b32 v5, 63, v5")
    e("v_cvt_f32_u32 v5, v5")
    e("v_mul_f32 v5, 0x3c800000, v5")
    e("v_lshlrev_b32 v6, 2, v3")
    e("v_cvt_f32_u32 v6, v6")
    import struct
    for kk in range(4):
        for q in range(4):
            lit = struct.unpack("<I", struct.pack("<f", float(16 * kk + q)))[0]
            e("v_add_f32 v7, 0x%x, v6" % lit)
            e("v_mul_f32 v7, v7, v5")
            e("v_cos_f32 v%d, v7" % (176 + q))
            e("v_sin_f32 v%d, v7" % (180 + q))
        e("s_nop 0")
        for q in range(4):
            e("v_cvt_pk_bf16_f32 v%d, v%d, -v%d" % (WQ + kk * 4 + q, 176 + q, 180 + q))
        if YL and kk == opt.get("ytw", 1):
            for l in take(-1, opt.get("yl0", 9)):
                e(l)
    for i in range(40):
        e("v_mov_b32 v%d, 0" % (AO + i))
    e("v_mov_b32 v%d, v4" % VL)
    e("v_add_u32 v%d, %d, v4" % (VL + 1, 3 * SLOT))
    e("v_add_u32 v13, %d, v4" % U_LDS)

    def w_reads(c, half, s):
        slot = c % NS
        r = []
        for k in range(2):
            for n in range(5):
                r.append("ds_read_b128 %s, v%d offset:%d" % (vr(fw(s, k, n)), VL + slot // 3, (slot % 3) * SLOT + n * 4096 + (2 * half + k) * 1024))
        return r

    def o_mfma(c, half, s):
        m = []
        for k in range(2):
            for n in range(5):
                m.append(M % (vr(AO + 4 * n), vr(fw(s, k, n)), ar(hreg(c, 2 * half + k)), vr(AO + 4 * n)))
        return m

    if YL:
        stamp(e, opt, 5)
        e("s_waitcnt vmcnt(%d)" % allowed_after(0))
        e("s_barrier")
        stamp(e, opt, 6)
        for l in w_reads(0, 0, 0) + take(-1, opt.get("ys1", 2)):
            e(l)
        e("s_waitcnt lgkmcnt(0)")
    elif opt.get("ys"):
        stamp(e, opt, 5)
        e("s_waitcnt vmcnt(%d)" % allowed_after(-1))
        e("s_barrier")
        stamp(e, opt, 6)
        for kk in range(4):
            for n in range(5):
                e("ds_read_b128 %s, v13 offset:%d" % (vr(fw(kk // 2, kk % 2, n)), n * 4096 + kk * 1024))
        for l in take(-1, opt.get("ys0", 2)):
            e(l)
        e("s_waitcnt lgkmcnt(10)")
        ym = []
        for kk in range(2):
            for n in range(5):
                ym.append(M % (vr(AY + 4 * n), vr(fw(0, kk, n)), vr(WQ + 4 * kk), vr(AY + 4 * n)))
        for l in interleave(ym, take(-1, YB // 2), per=1):
            e(l)
        e("s_waitcnt lgkmcnt(0)")
        ym = []
        for kk in range(2, 4):
            for n in range(5):
                ym.append(M % (vr(AY + 4 * n), vr(fw(1, kk - 2, n)), vr(WQ + 4 * kk), vr(AY + 4 * n)))
        for l in interleave(ym, take(-1, YB - YB // 2), per=1):
            e(l)
        e("s_waitcnt vmcnt(%d)" % allowed_after(0))
        e("s_barrier")
        for l in w_reads(0, 0, 0) + take(-1, opt.get("ys1", 2)):
            e(l)
        e("s_waitcnt lgkmcnt(0)")
    else:
        stamp(e, opt, 5)
        e("s_waitcnt vmcnt(%d)" % allowed_after(0))
        e("s_barrier")
        stamp(e, opt, 6)
        for kk in range(4):
            for n in range(5):
                e("ds_read_b128 %s, v13 offset:%d" % (vr(fw(kk // 2, kk % 2, n)), n * 4096 + kk * 1024))
        e("s_waitcnt lgkmcnt(10)")
        ym = []
        for kk in range(2):
            for n in range(5):
                ym.append(M % (vr(AY + 4 * n), vr(fw(0, kk, n)), vr(WQ + 4 * kk), vr(AY + 4 * n)))
        for l in interleave(ym, take(-1, YB // 2), per=1):
            e(l)
        e("s_waitcnt lgkmcnt(0)")
        ym = []
        for kk in range(2, 4):
            for n in range(5):
                ym.append(M % (vr(AY + 4 * n), vr(fw(1, kk - 2, n)), vr(WQ + 4 * kk), vr(AY + 4 * n)))
        for l in interleave(ym, w_reads(0, 0, 0) + take(-1, YB - YB // 2), per=2):
            e(l)
        e("s_waitcnt lgkmcnt(0)")

    stamp(e, opt, 7)
    def x_setup():
        r = []
        s = []
        s.append("s_lshl_b32 s43, s7, 10\ns_lshl_b32 s44, s6, 5\ns_add_u32 s43, s43, s44\ns_add_u32 s43, s43, s4\ns_mul_i32 s43, s43, 1280\ns_mul_i32 s44, s5, 160\ns_add_u32 s43, s43, s44")
        r += s
        for rr in range(3):
            r.append("v_add_u32 v184, %d, v1\nv_mul_u32_u24 v185, 205, v184\nv_lshrrev_b32 v185, 11, v185\nv_mul_u32_u24 v186, 10, v185\nv_sub_u32 v186, v184, v186" % (64 * rr))
            r.append("v_mul_u32_u24 v187, 0x14000, v185\nv_lshl_add_u32 v%d, v186, 4, v187\nv_mul_u32_u24 v187, 336, v185\nv_lshl_add_u32 v%d, v186, 5, v187" % (176 + rr, 180 + rr))
        for rr in range(3):
            if rr == 2:
                r.append("s_mov_b32 exec_hi, 0\nbuffer_load_dwordx4 %s, v%d, s[12:15], s43 offen\ns_mov_b32 exec_hi, -1" % (vr(XP + 4 * rr), 176 + rr))
            else:
                r.append("buffer_load_dwordx4 %s, v%d, s[12:15], s43 offen" % (vr(XP + 4 * rr), 176 + rr))
        return r

    HB0 = HB
    for c in range(NCH):
        HB = opt.get("hbe", HB0) if c < opt.get("hbn", 0) else HB0
        oth = w_reads(c, 1, 1) + take(2 * c, HB)
        for l in interleave(o_mfma(c, 0, 0), oth, per=2):
            e(l)
        e("s_waitcnt lgkmcnt(0)")
        if c < NCH - 1:
            e("s_waitcnt vmcnt(%d)" % min(63, allowed_after(c + 1)))
            e("s_barrier")
            oth = w_reads(c + 1, 0, 0) + take(2 * c + 1, HB)
            if c == opt.get("xc2", 7):
                oth = oth + x_setup()
                issued.extend([99] * 3)
            for l in interleave(o_mfma(c, 1, 1), oth, per=2):
                e(l)
            e("s_waitcnt lgkmcnt(0)")
            if YL and c == YL - 1:
                F2 = 216
                def fy(kk, n): return fw(1, kk, n) if kk < 2 else F2 + ((kk - 2) * 5 + n) * 4
                for kk in range(4):
                    for n in range(5):
                        e("ds_read_b128 %s, v13 offset:%d" % (vr(fy(kk, n)), n * 4096 + kk * 1024))
                for l in take(2 * c + 1, opt.get("yl1", 2)):
                    e(l)
                e("s_waitcnt lgkmcnt(10)")
                for part in range(2):
                    ym = []
                    for kk in range(2 * part, 2 * part + 2):
                        for n in range(5):
                            ym.append(M % (vr(AY + 4 * n), vr(fy(kk, n)), vr(WQ + 4 * kk), vr(AY + 4 * n)))
                    for l in interleave(ym, take(2 * c + 1, opt.get("yl2", 2)), per=2):
                        e(l)
                    if part == 0:
                        e("s_waitcnt lgkmcnt(0)")
            if c == 3: stamp(e, opt, 8)
            if c == 7: stamp(e, opt, 9)
        else:
            for l in o_mfma(c, 1, 1):
                e(l)
    assert not queue, queue
    stamp(e, opt, 10)
    e("s_cmp_eq_u32 s5, 0")
    e("s_cselect_b32 s44, 0xffff, 0")
    e("s_mov_b32 s45, 0")
    e("s_mov_b32 s40, 0xbfb8aa3b")
    e("v_mov_b32 v188, s40")
    e("v_mov_b32 v189, s40")
    e("v_mov_b32 v190, 1.0")
    e("v_mov_b32 v191, 1.0")
    e("v_cndmask_b32_e64 v%d, v%d, 0, s[44:45]" % (AY, AY))
    e("s_mul_i32 s46, s3, %d" % SLOT)
    e("v_mul_u32_u24 v5, 336, v2")
    e("v_lshl_add_u32 v5, v3, 4, v5")
    e("v_add_u32 v5, s46, v5")
    for rr in range(3):
        e("v_add_u32 v%d, s46, v%d" % (180 + rr, 180 + rr))
    Z = 56
    e("s_nop 1")
    for k in range(10):
        e("v_pk_mul_f32 %s, %s, v[188:189]" % (vr(Z + 2 * k, 2), vr(AO + 2 * k, 2)))
    for k in range(20):
        e("v_exp_f32 v%d, v%d" % (Z + k, Z + k))
    for k in range(10):
        e("v_pk_mul_f32 %s, %s, %s" % (vr(AY + 2 * k, 2), vr(AY + 2 * k, 2), vr(AO + 2 * k, 2)))
    for k in range(10):
        e("v_pk_add_f32 %s, %s, v[190:191]" % (vr(Z + 2 * k, 2), vr(Z + 2 * k, 2)))
    for k in range(20):
        e("v_rcp_f32 v%d, v%d" % (Z + k, Z + k))
    e("s_nop 0")
    for n in range(5):
        for hh in range(2):
            k = 2 * n + hh
            e("v_pk_mul_f32 %s, %s, %s" % (vr(AY + 2 * k, 2), vr(AY + 2 * k, 2), vr(Z + 2 * k, 2)))
        e("ds_write_b128 v5, %s offset:%d" % (vr(AY + 4 * n), n * 64))
    e("s_waitcnt lgkmcnt(0)")
    stamp(e, opt, 11)
    PB = 96
    for rr in range(3):
        e("ds_read_b128 %s, v%d" % (vr(PB + 8 * rr), 180 + rr))
        e("ds_read_b128 %s, v%d offset:16" % (vr(PB + 8 * rr + 4), 180 + rr))
    XU = 192
    e("s_waitcnt vmcnt(0)")
    for rr in range(3):
        for k in range(4):
            e("v_lshlrev_b32 v%d, 16, v%d" % (XU + 8 * rr + 2 * k, XP + 4 * rr + k))
            e("v_and_b32 v%d, 0xffff0000, v%d" % (XU + 8 * rr + 2 * k + 1, XP + 4 * rr + k))
    e("s_waitcnt lgkmcnt(0)")
    for rr in range(3):
        for k in range(4):
            e("v_pk_add_f32 %s, %s, %s" % (vr(XU + 8 * rr + 2 * k, 2), vr(XU + 8 * rr + 2 * k, 2), vr(PB + 8 * rr + 2 * k, 2)))
        for k in range(4):
            e("v_cvt_pk_bf16_f32 v%d, v%d, v%d" % (XP + 4 * rr + k, XU + 8 * rr + 2 * k, XU + 8 * rr + 2 * k + 1))
        if rr == 2:
            e("s_mov_b32 exec_hi, 0")
        e("buffer_store_dwordx4 %s, v%d, s[16:19], s43 offen" % (vr(XP + 4 * rr), 176 + rr))
    stamp(e, opt, 12)
    prof_out(e, opt, 1, 4, 3, 8)
    e("L2_END:")
    e("s_endpgm")
    return e.text()
```

```python
import sys
KN = "recurrent_scan__spectral_fnet__dense_activation_silu__prompt"

WS_H = 0
WS_U = 0x600000
WS_W2T = 0x880000
WS_END = 0xA60000
WS_W2L = 0x1000000
W2L_SZ = 0xF0000
WS_END2 = WS_W2L + 8 * W2L_SZ


PROF_ON = False


class E:
    def __init__(self):
        self.L = []

    def __call__(self, s):
        for x in s.split("\n"):
            x = x.strip()
            if x:
                self.L.append(x)

    def text(self):
        return "\n".join(("" if l.endswith(":") else "  ") + l for l in self.L) + "\n"


def vr(b, n=4):
    return "v[%d:%d]" % (b, b + n - 1)


def srd(e, d, lo, nbytes):
    if nbytes == WS_END and PROF_ON:
        nbytes = 0x1000000
    e("s_mov_b32 s%d, s%d" % (d, lo))
    e("s_mov_b32 s%d, s%d" % (d + 1, lo + 1))
    e("s_mov_b32 s%d, 0x%x" % (d + 2, nbytes))
    e("s_mov_b32 s%d, 0x00020000" % (d + 3))


PROF_BASE = 0xB00000


def stamp(e, opt, i, real=False):
    if opt.get("prof"):
        e("%s s[%d:%d]" % ("s_memrealtime" if real else "s_memtime", 70 + 2 * i, 71 + 2 * i))


def prof_out(e, opt, kern, nwaves, wave_sreg, srd0, n=16, vb=240):
    if not opt.get("prof"):
        return
    e("s_mov_b64 exec, -1")
    e("s_waitcnt vmcnt(0)")
    stamp(e, opt, n - 2)
    stamp(e, opt, n - 1, real=True)
    e("s_waitcnt lgkmcnt(0)")
    e("s_mul_i32 s68, s2, %d" % nwaves)
    e("s_add_u32 s68, s68, s%d" % wave_sreg)
    e("s_lshl_b32 s68, s68, 6")
    e("s_add_u32 s68, s68, 0x%x" % (PROF_BASE + kern * 0x40000))
    e("v_mov_b32 v%d, 0" % (vb + 4))
    for i in range(n):
        e("v_mov_b32 v%d, s%d" % (vb + (i % 4), 70 + 2 * i))
        if i % 4 == 3:
            e("s_mov_b64 exec, 1")
            e("buffer_store_dwordx4 v[%d:%d], v%d, s[%d:%d], s68 offen offset:%d" % (vb, vb + 3, vb + 4, srd0, srd0 + 3, (i // 4) * 16))
            e("s_waitcnt vmcnt(0)")
            e("s_mov_b64 exec, -1")


def interleave(mf, other, per=2, start=0):
    out = []
    o = list(other)
    for i, m in enumerate(mf):
        out.append(m)
        if i >= start:
            for _ in range(per):
                if o:
                    out.append(o.pop(0))
    out += o
    return out


X_LDS = 0
W1_LDS = 65536
H_LDS = 114688
W2S_LDS = 139264
ST_LDS = 147456
CS_LDS = 148480
L1_LDS = 148864


def rot_calc(e, opt):
    a, b, q, p = opt["rot3"]
    e("s_lshr_b32 s40, s2, 5")
    e("s_mul_i32 s40, s40, %d" % a)
    e("s_lshr_b32 s41, s2, 3")
    e("s_and_b32 s41, s41, 3")
    e("s_mul_i32 s41, s41, %d" % b)
    e("s_add_u32 s40, s40, s41")
    e("s_lshr_b32 s41, s2, 1")
    e("s_and_b32 s41, s41, 3")
    e("s_mul_i32 s41, s41, %d" % q)
    e("s_add_u32 s40, s40, s41")
    e("s_and_b32 s41, s2, 1")
    e("s_mul_i32 s41, s41, %d" % p)
    e("s_add_u32 s40, s40, s41")
    e("s_mul_i32 s41, s40, 205")
    e("s_lshr_b32 s41, s41, 11")
    e("s_mul_i32 s41, s41, 10")
    e("s_sub_u32 s62, s40, s41")


def gen_l1(opt):
    e = E()
    NCH = 10
    e("s_cmp_ge_u32 s2, 256")
    e("s_cbranch_scc1 L1_END")
    stamp(e, opt, 0, real=True)
    stamp(e, opt, 1)
    e("s_load_dwordx2 s[28:29], s[0:1], 0")
    e("s_load_dwordx2 s[30:31], s[0:1], 24")
    e("s_load_dwordx2 s[32:33], s[0:1], 32")
    e("s_load_dwordx2 s[34:35], s[0:1], 48")
    e("s_load_dwordx2 s[36:37], s[0:1], 56")
    e("s_load_dwordx2 s[38:39], s[0:1], 80")
    e("v_lshrrev_b32 v2, 6, v0")
    e("v_and_b32 v1, 63, v0")
    e("v_readfirstlane_b32 s3, v2")
    e("s_and_b32 s40, s2, 7")
    e("s_lshr_b32 s41, s2, 3")
    if opt.get("rbm") == 2:
        e("s_lshr_b32 s5, s40, 1")
        e("s_sub_u32 s42, 7, s5")
        e("s_bitcmp1_b32 s41, 0")
        e("s_cselect_b32 s5, s42, s5")
        e("s_and_b32 s42, s41, 2")
        e("s_lshl_b32 s42, s42, 2")
        e("s_add_u32 s5, s5, s42")
    elif opt.get("rbm"):
        e("s_and_b32 s5, s40, 6")
        e("s_and_b32 s42, s41, 1")
        e("s_add_u32 s5, s5, s42")
        e("s_and_b32 s42, s41, 2")
        e("s_lshl_b32 s42, s42, 2")
        e("s_add_u32 s5, s5, s42")
    else:
        e("s_lshr_b32 s5, s40, 1")
        e("s_lshl_b32 s5, s5, 2")
        e("s_and_b32 s42, s41, 3")
        e("s_add_u32 s5, s5, s42")
    e("s_and_b32 s6, s40, 1")
    e("s_lshl_b32 s6, s6, 3")
    e("s_lshr_b32 s42, s41, 2")
    e("s_add_u32 s6, s6, s42")
    e("s_and_b32 s4, s3, 3")
    e("s_lshl_b32 s7, s5, 2")
    e("s_add_u32 s7, s7, s4")
    e("v_and_b32 v2, 15, v1")
    e("v_lshrrev_b32 v3, 4, v1")
    e("v_lshrrev_b32 v6, 1, v2")
    e("v_xor_b32 v6, v6, v3")
    e("v_lshlrev_b32 v6, 4, v6")
    e("v_lshl_add_u32 v4, v2, 7, v6")
    e("v_xor_b32 v5, 64, v4")
    if opt.get("lonly"):
        e("s_cmp_lt_u32 s3, 8")
        e("s_cbranch_scc1 L1_END")
    e("s_cmp_ge_u32 s3, 4")
    e("s_cbranch_scc1 L1_B")

    ACC = 16
    CSA = 64
    FR = [72, 104]
    ONES = 136
    XA = 140
    WA = 142
    def acc(mu, p, u): return ACC + ((mu * 3 + p) * 2 + u) * 4
    def fx(s, mu): return FR[s] + mu * 4
    def fw(s, p, u): return FR[s] + 8 + (p * 2 + u) * 4
    e("s_cmp_eq_u32 s4, 3")
    e("s_cselect_b32 s8, 0, s4")
    e("s_lshl_b32 s40, s4, 12")
    e("v_add_u32 v%d, s40, v4" % XA)
    e("v_add_u32 v%d, s40, v5" % (XA + 1))
    e("v_lshrrev_b32 v6, 2, v2")
    e("v_lshl_add_u32 v6, v3, 3, v6")
    e("v_mul_u32_u24 v6, 192, v6")
    e("v_and_b32 v7, 1, v2")
    e("v_lshl_add_u32 v6, v7, 3, v6")
    e("v_lshrrev_b32 v7, 1, v2")
    e("v_and_b32 v7, 1, v7")
    e("v_and_b32 v8, 1, v3")
    e("v_lshlrev_b32 v8, 1, v8")
    e("v_xor_b32 v7, v7, v8")
    e("v_lshl_add_u32 v6, v7, 4, v6")
    e("v_xor_b32 v7, 32, v6")
    for p in range(3):
        e("s_add_u32 s40, s8, %d" % p)
        e("s_cmp_ge_u32 s40, 3")
        e("s_cselect_b32 s41, 3, 0")
        e("s_sub_u32 s40, s40, s41")
        e("s_mov_b32 s%d, s40" % (44 + p))
        e("s_lshl_b32 s40, s40, 6")
        e("s_add_u32 s40, s40, %d" % W1_LDS)
        e("v_add_u32 v%d, s40, v6" % (WA + 2 * p))
        e("v_add_u32 v%d, s40, v7" % (WA + 2 * p + 1))
    for i in range(48 + 8):
        e("v_mov_b32 v%d, 0" % (ACC + i))
    for i in range(4):
        e("v_mov_b32 v%d, 0x3f803f80" % (ONES + i))

    def a_reads(c, ks, s):
        slot = c % 4
        r = []
        for mu in range(2):
            r.append("ds_read_b128 %s, v%d offset:%d" % (vr(fx(s, mu)), XA + ks, slot * 16384 + mu * 2048))
        for p in range(3):
            for u in range(2):
                for h in range(2):
                    r.append("ds_read_b64_tr_b16 %s, v%d offset:%d" % (vr(fw(s, p, u) + 2 * h, 2), WA + 2 * p + u, slot * 12288 + ks * 6144 + h * 768))
        return r

    def a_mfma(s):
        m = []
        for p in range(3):
            for u in range(2):
                for mu in range(2):
                    m.append("v_mfma_f32_16x16x32_bf16 %s, %s, %s, %s" % (vr(acc(mu, p, u)), vr(fw(s, p, u)), vr(fx(s, mu)), vr(acc(mu, p, u))))
                if p == 0:
                    m.append("v_mfma_f32_16x16x32_bf16 %s, %s, %s, %s" % (vr(CSA + 4 * u), vr(fw(s, 0, u)), vr(ONES), vr(CSA + 4 * u)))
        return m

    PF = opt.get("pf", 1)
    if PF:
        for _ in range(opt.get("np", 1)):
            e("s_barrier")
    stamp(e, opt, 5)
    e("s_barrier")
    if opt.get("pfonly"):
        e("s_endpgm")
    stamp(e, opt, 6)
    for r in a_reads(0, 0, 0):
        e(r)
    e("s_waitcnt lgkmcnt(0)")
    for c in range(NCH):
        for l in interleave(a_mfma(0), a_reads(c, 1, 1), per=2):
            e(l)
        e("s_waitcnt lgkmcnt(0)")
        if c < NCH - 1:
            e("s_barrier")
            for l in interleave(a_mfma(1), a_reads(c + 1, 0, 0), per=2):
                e(l)
            e("s_waitcnt lgkmcnt(0)")
            if c == 3: stamp(e, opt, 7)
            if c == 6: stamp(e, opt, 8)
        else:
            for l in a_mfma(1):
                e(l)
    stamp(e, opt, 9)
    T = 148
    e("v_lshlrev_b32 v6, 4, v3")
    e("s_lshl_b32 s40, s8, 7")
    e("s_add_u32 s40, s40, %d" % CS_LDS)
    e("v_add_u32 v7, s40, v6")
    e("s_lshl_b32 s40, s4, 8")
    e("s_add_u32 s40, s40, %d" % ST_LDS)
    e("v_lshlrev_b32 v8, 2, v2")
    e("v_add_u32 v8, s40, v8")
    for p in range(3):
        e("s_lshl_b32 s40, s%d, 7" % (44 + p))
        e("s_add_u32 s40, s40, %d" % CS_LDS)
        e("v_add_u32 v%d, s40, v6" % (9 + p))
    e("v_lshlrev_b32 v12, 4, v1")
    e("s_mov_b32 exec_lo, 0x00010001")
    e("s_mov_b32 exec_hi, 0x00010001")
    e("s_nop 4")
    e("ds_write_b128 v7, %s" % vr(CSA))
    e("ds_write_b128 v7, %s offset:64" % vr(CSA + 4))
    e("s_mov_b64 exec, -1")
    srd(e, 24, 38, WS_END)
    e("s_waitcnt lgkmcnt(0)")
    e("s_barrier")
    stamp(e, opt, 10)
    for mu in range(2):
        e("ds_read_b32 v%d, v8 offset:%d" % (72 + 2 * mu, mu * 64))
        e("ds_read_b32 v%d, v8 offset:%d" % (76 + 2 * mu, 128 + mu * 64))
    CSR = 80
    for p in range(3):
        for u in range(2):
            e("ds_read_b128 %s, v%d offset:%d" % (vr(CSR + (p * 2 + u) * 4), 9 + p, u * 64))
    e("s_mov_b32 s40, 0x3acccccd")
    e("s_mov_b32 s41, 0x3727c5ac")
    e("s_mov_b32 s42, 0xbfb8aa3b")
    e("v_mov_b32 v104, 1.0")
    e("v_mov_b32 v105, 1.0")
    e("s_waitcnt lgkmcnt(6)")
    for mu in range(2):
        m, q = 72 + 2 * mu, 76 + 2 * mu
        e("v_mul_f32 v%d, s40, v%d" % (m, m))
        e("v_mul_f32 v%d, s40, v%d" % (q, q))
        e("v_fma_f32 v%d, -v%d, v%d, v%d" % (q, m, m, q))
        e("v_add_f32 v%d, s41, v%d" % (q, q))
        e("v_rsq_f32 v%d, v%d" % (q, q))
    e("s_nop 0")
    for mu in range(2):
        q = 76 + 2 * mu
        e("v_mul_f32 v%d, s42, v%d" % (106 + 2 * mu, q))
    e("s_waitcnt lgkmcnt(0)")
    e("s_mul_i32 s40, s7, 96")
    e("s_mul_i32 s41, s6, 3")
    e("s_add_u32 s40, s40, s41")
    TT = 112
    ZZ = 120
    OUT = 128
    n = 0
    for mu in range(2):
        m, r_, rn = 72 + 2 * mu, 76 + 2 * mu, 106 + 2 * mu
        for p in range(3):
            for u in range(2):
                for hh in range(2):
                    a = acc(mu, p, u) + 2 * hh
                    cs = CSR + (p * 2 + u) * 4 + 2 * hh
                    t = TT + u * 4 + hh * 2
                    e("v_pk_fma_f32 %s, %s, %s, %s op_sel_hi:[1,0,1] neg_lo:[0,1,0] neg_hi:[0,1,0]" % (vr(t, 2), vr(cs, 2), vr(m, 2), vr(a, 2)))
            for k in range(4):
                e("v_pk_mul_f32 %s, %s, %s op_sel_hi:[1,0]" % (vr(ZZ + 2 * k, 2), vr(TT + 2 * k, 2), vr(rn, 2)))
            for k in range(8):
                e("v_exp_f32 v%d, v%d" % (ZZ + k, ZZ + k))
            for k in range(4):
                e("v_pk_mul_f32 %s, %s, %s op_sel_hi:[1,0]" % (vr(TT + 2 * k, 2), vr(TT + 2 * k, 2), vr(r_, 2)))
            for k in range(4):
                e("v_pk_add_f32 %s, %s, v[104:105]" % (vr(ZZ + 2 * k, 2), vr(ZZ + 2 * k, 2)))
            for k in range(8):
                e("v_rcp_f32 v%d, v%d" % (ZZ + k, ZZ + k))
            e("s_add_u32 s41, s40, s%d" % (44 + p))
            e("s_add_u32 s41, s41, %d" % (mu * 48))
            e("s_lshl_b32 s41, s41, 10")
            for k in range(4):
                e("v_pk_mul_f32 %s, %s, %s" % (vr(TT + 2 * k, 2), vr(TT + 2 * k, 2), vr(ZZ + 2 * k, 2)))
            o = OUT + 4 * n
            for k in range(4):
                e("v_cvt_pk_bf16_f32 v%d, v%d, v%d" % (o + k, TT + 2 * k, TT + 2 * k + 1))
            e("buffer_store_dwordx4 %s, v12, s[24:27], s41 offen%s" % (vr(o), opt.get("hst", "")))
            n += 1
            if n == opt.get("be2", 4):
                e("s_barrier")
    stamp(e, opt, 11)
    prof_out(e, opt, 0, 12, 3, 24, vb=160)
    e("s_endpgm")

    e("L1_B:")
    e("s_cmp_ge_u32 s3, 8")
    e("s_cbranch_scc1 L1_L")
    ZA = 16
    GA = 40
    FB = [48, 68]
    TW = 88
    XB = 121
    HB = 123
    UW = 125
    UR_ = 112
    UG = 115
    def za(mu, T): return ZA + (mu * 3 + T) * 4
    def bx(s, mu): return FB[s] + mu * 4
    def bh(s, T): return FB[s] + 8 + T * 4
    NPF0 = opt.get("npf0", 3)
    pfq = list(range(10))
    def pf_one():
        pfq.pop(0)
        t = "s_mul_i32 s64, s62, s65\n"
        if opt.get("pfm"):
            t += "s_mov_b64 exec, s[66:67]\nbuffer_load_dword v153, v152, s[8:11], s64 offen\ns_mov_b64 exec, -1\n"
        else:
            t += "buffer_load_dword v153, v152, s[8:11], s64 offen\n"
        t += "s_add_u32 s62, s62, 1\ns_cmp_eq_u32 s62, 10\ns_cselect_b32 s62, 0, s62"
        return t
    if PF:
        if opt.get("rot3"):
            rot_calc(e, opt)
        else:
            e("s_mov_b32 s62, 0")
        e("s_lshr_b32 s40, s2, 3")
        e("s_and_b32 s41, s2, 1")
        e("s_mov_b32 s64, 0")
        e("s_mov_b32 s66, 0x55555555")
        e("s_mov_b32 s67, 0x55555555")
        e("s_cmp_eq_u32 s4, 0")
        e("s_cbranch_scc1 L1_BPX")
        e("s_cmp_eq_u32 s4, 1")
        e("s_cbranch_scc1 L1_BPW")
        e("s_mul_i32 s42, s41, 160")
        e("s_mul_i32 s43, s40, 5")
        e("s_add_u32 s42, s42, s43")
        e("s_mul_i32 s42, s42, 1280")
        e("v_lshrrev_b32 v152, 1, v1")
        e("v_min_u32 v152, 4, v152")
        e("v_mul_u32_u24 v152, 1280, v152")
        e("v_and_b32 v153, 1, v1")
        e("v_lshl_add_u32 v152, v153, 6, v152")
        e("v_add_u32 v152, s42, v152")
        e("s_mov_b32 s65, 128")
        e("s_mov_b32 s66, 0x155")
        e("s_mov_b32 s67, 0")
        e("s_waitcnt lgkmcnt(0)")
        e("s_cmp_eq_u32 s4, 2")
        e("s_cselect_b32 s8, s30, s32")
        e("s_cselect_b32 s9, s31, s33")
        e("s_mov_b32 s10, %d" % (640 * 1280))
        e("s_branch L1_BPJ")
        e("L1_BPW:")
        e("s_lshl_b32 s42, s40, 1")
        e("s_mul_i32 s42, s42, 3072")
        e("s_mul_i32 s43, s41, 1536")
        e("s_add_u32 s42, s42, s43")
        e("v_add_u32 v153, -48, v1")
        e("v_min_u32 v153, v153, v1")
        e("v_cmp_lt_u32 vcc, 23, v153")
        e("v_mov_b32 v154, %d" % (3072 - 24 * 64))
        e("s_mov_b32 s65, 196608")
        e("s_mov_b32 s67, 0x5555")
        e("v_cndmask_b32 v152, 0, v154, vcc")
        e("v_lshl_add_u32 v152, v153, 6, v152")
        e("v_add_u32 v152, s42, v152")
        e("s_waitcnt lgkmcnt(0)")
        e("s_mov_b32 s8, s34")
        e("s_mov_b32 s9, s35")
        e("s_mov_b32 s10, %d" % (640 * 3072))
        e("s_branch L1_BPJ")
        e("L1_BPX:")
        e("s_lshr_b32 s40, s2, 5")
        e("s_and_b32 s41, s40, 1")
        e("s_lshl_b32 s41, s41, 10")
        e("s_lshl_b32 s42, s5, 2")
        e("s_add_u32 s41, s41, s42")
        e("s_lshr_b32 s40, s40, 1")
        e("s_add_u32 s41, s41, s40")
        e("s_mul_i32 s41, s41, 1280")
        e("v_bfe_u32 v152, v1, 1, 4")
        e("v_mul_u32_u24 v152, 0x14000, v152")
        e("v_and_b32 v153, 1, v1")
        e("v_lshl_add_u32 v152, v153, 6, v152")
        e("v_add_u32 v152, s41, v152")
        e("s_mov_b32 s65, 128")
        e("s_mov_b32 s67, 0")
        e("s_waitcnt lgkmcnt(0)")
        e("s_mov_b32 s8, s28")
        e("s_mov_b32 s9, s29")
        e("s_mov_b32 s10, %d" % (2048 * 1280))
        e("L1_BPJ:")
        e("s_mov_b32 s11, 0x00020000")
        for _ in range(NPF0):
            e(pf_one())
        stamp(e, opt, 3)
        if not opt.get("sw"):
            e("s_waitcnt vmcnt(%d)" % opt.get("pfw", NPF0 - 1))
            stamp(e, opt, 4)
            e("s_barrier")
    e("s_lshl_b32 s50, s4, 12")
    e("v_add_u32 v%d, s50, v4" % XB)
    e("v_add_u32 v%d, s50, v5" % (XB + 1))
    e("v_add_u32 v%d, %d, v4" % (HB, H_LDS))
    e("v_add_u32 v%d, %d, v5" % (HB + 1, H_LDS))
    e("v_mul_u32_u24 v6, 1280, v3")
    e("v_lshl_add_u32 v6, v2, 4, v6")
    e("s_lshl_b32 s40, s4, 2")
    e("v_add_u32 v%d, s40, v6" % UW)
    e("s_lshl_b32 s40, s4, 6")
    e("s_mov_b32 s41, 81920")
    for rr in range(3):
        e("s_add_u32 s42, s40, %d" % (rr * 256))
        e("v_add_u32 v6, s42, v1")
        e("v_lshlrev_b32 v%d, 4, v6" % (UR_ + rr))
        e("v_mul_u32_u24 v7, 3277, v6")
        e("v_lshrrev_b32 v7, 16, v7")
        e("v_mul_u32_u24 v8, 20, v7")
        e("v_sub_u32 v8, v6, v8")
        e("v_mul_lo_u32 v7, v7, s41")
        e("v_lshl_add_u32 v%d, v8, 4, v7" % (UG + rr))
    e("v_lshlrev_b32 v6, 8, v3")
    e("v_add_u32 v6, s7, v6")
    e("v_cvt_f32_u32 v6, v6")
    e("v_mul_f32 v6, 0x3a000000, v6")
    e("v_cvt_f32_u32 v7, v2")
    e("v_add_f32 v8, 0x41800000, v7")
    for tau in range(2):
        for j in range(8):
            cj = ((j & 3) + 16 * (j >> 2)) / 32.0
            import struct
            lit = struct.unpack("<I", struct.pack("<f", cj))[0]
            e("v_add_f32 v9, 0x%x, v6" % lit)
            e("v_mul_f32 v9, v9, v%d" % (7 + tau))
            e("v_cos_f32 v%d, v9" % (128 + j))
            e("v_sin_f32 v%d, v9" % (136 + j))
        e("s_nop 0")
        for k in range(4):
            e("v_cvt_pk_bf16_f32 v%d, v%d, v%d" % (TW + tau * 4 + k, 128 + 2 * k, 128 + 2 * k + 1))
            e("v_cvt_pk_bf16_f32 v%d, v%d, v%d" % (TW + 8 + tau * 4 + k, 136 + 2 * k, 136 + 2 * k + 1))
        for k in range(4):
            e("v_xor_b32 v%d, 0x80008000, v%d" % (TW + 16 + tau * 4 + k, TW + tau * 4 + k))
    for i in range(32):
        e("v_mov_b32 v%d, 0" % (ZA + i))
    e("s_waitcnt lgkmcnt(0)")
    stamp(e, opt, 2)
    srd(e, 24, 38, WS_END)

    def b_reads(c, ks, s):
        slot = c % 4
        r = []
        for mu in range(2):
            r.append("ds_read_b128 %s, v%d offset:%d" % (vr(bx(s, mu)), XB + ks, slot * 16384 + mu * 2048))
        for T in range(3):
            r.append("ds_read_b128 %s, v%d offset:%d" % (vr(bh(s, T)), HB + ks, slot * 6144 + T * 2048))
        return r

    def b_mfma(s):
        m = []
        for T in range(3):
            for mu in range(2):
                m.append("v_mfma_f32_16x16x32_bf16 %s, %s, %s, %s" % (vr(za(mu, T)), vr(bx(s, mu)), vr(bh(s, T)), vr(za(mu, T))))
        for mu in range(2):
            m.append("v_mfma_f32_16x16x32_bf16 %s, %s, %s, %s" % (vr(GA + 4 * mu), vr(bx(s, mu)), vr(bx(s, mu)), vr(GA + 4 * mu)))
        return m

    if PF and opt.get("sw"):
        for p in range(opt.get("np", 1)):
            e("s_waitcnt vmcnt(%d)" % (NPF0 - 1))
            if p == 0: stamp(e, opt, 4)
            e("s_barrier")
            e(pf_one())
        e("s_waitcnt vmcnt(%d)" % (NPF0 - 1))
    stamp(e, opt, 5)
    e("s_barrier")
    stamp(e, opt, 6)
    if PF:
        for _ in range(opt.get("npf1", 2)):
            if pfq: e(pf_one())
    if opt.get("pfonly"):
        while pfq:
            e("s_barrier")
            e(pf_one())
        e("s_endpgm")
    for r in b_reads(0, 0, 0):
        e(r)
    e("s_waitcnt lgkmcnt(0)")
    for c in range(NCH):
        for l in interleave(b_mfma(0), b_reads(c, 1, 1), per=2):
            e(l)
        e("s_waitcnt lgkmcnt(0)")
        if c < NCH - 1:
            if PF and opt.get("sw"):
                need = min(9, c + opt.get("swn", 3))
                e("s_waitcnt vmcnt(%d)" % max(0, (10 - len(pfq)) - 1 - need))
            e("s_barrier")
            oth = b_reads(c + 1, 0, 0)
            if PF and pfq:
                oth = [pf_one()] + oth
            for l in interleave(b_mfma(1), oth, per=2):
                e(l)
            e("s_waitcnt lgkmcnt(0)")
            if c == 3: stamp(e, opt, 7)
            if c == 6: stamp(e, opt, 8)
        else:
            for l in b_mfma(1):
                e(l)
    stamp(e, opt, 9)
    if opt.get("bprio", 1):
        e("s_setprio %d" % opt.get("bprio", 1))
    e("s_lshl_b32 s40, s4, 8")
    e("s_add_u32 s40, s40, %d" % ST_LDS)
    e("v_lshlrev_b32 v6, 2, v2")
    e("v_add_u32 v6, s40, v6")
    e("v_lshlrev_b32 v7, 4, v3")
    e("v_add_u32 v7, s40, v7")
    e("s_mov_b32 s58, 0xaaaaaaaa")
    e("s_mov_b32 s59, 0xaaaaaaaa")
    e("s_mov_b32 s60, 0xcccccccc")
    e("s_mov_b32 s61, 0xcccccccc")
    e("s_nop 2")
    for mu in range(2):
        g = GA + 4 * mu
        e("v_cndmask_b32_e64 v8, v%d, v%d, s[58:59]" % (g, g + 1))
        e("v_cndmask_b32_e64 v9, v%d, v%d, s[58:59]" % (g + 2, g + 3))
        e("v_cndmask_b32_e64 v%d, v8, v9, s[60:61]" % (10 + mu))
    e("s_mov_b32 exec_lo, 0x00f0000f")
    e("s_mov_b32 exec_hi, 0xf0000f00")
    for mu in range(2):
        e("ds_write_b32 v6, v%d offset:%d" % (10 + mu, 128 + mu * 64))
    e("s_mov_b32 exec_lo, 0x00100010")
    e("s_mov_b32 exec_hi, 0x00100010")
    for mu in range(2):
        e("ds_write_b128 v7, %s offset:%d" % (vr(za(mu, 2)), mu * 64))
    e("s_mov_b64 exec, -1")
    e("s_waitcnt lgkmcnt(0)")
    e("s_barrier")
    stamp(e, opt, 10)
    SUM = 48
    SQ = 56
    for mu in range(2):
        e("ds_read_b128 %s, v7 offset:%d" % (vr(SUM + 4 * mu), mu * 64))
        e("ds_read_b128 %s, v7 offset:%d" % (vr(SQ + 4 * mu), 128 + mu * 64))
    e("s_mov_b32 s40, 0x3acccccd")
    e("s_mov_b32 s41, 0x3727c5ac")
    e("s_waitcnt lgkmcnt(0)")
    for k in range(8):
        e("v_mul_f32 v%d, s40, v%d" % (SUM + k, SUM + k))
        e("v_mul_f32 v%d, s40, v%d" % (SQ + k, SQ + k))
        e("v_fma_f32 v%d, -v%d, v%d, v%d" % (SQ + k, SUM + k, SUM + k, SQ + k))
        e("v_add_f32 v%d, s41, v%d" % (SQ + k, SQ + k))
        e("v_rsq_f32 v%d, v%d" % (SQ + k, SQ + k))
    e("s_nop 0")
    ZF = 64
    for T in range(3):
        for mu in range(2):
            for hh in range(2):
                a = za(mu, T) + 2 * hh
                e("v_pk_mul_f32 %s, %s, %s" % (vr(a, 2), vr(a, 2), vr(SQ + 4 * mu + 2 * hh, 2)))
        for mu in range(2):
            for hh in range(2):
                a = za(mu, T) + 2 * hh
                e("v_cvt_pk_bf16_f32 v%d, v%d, v%d" % (ZF + 4 * T + 2 * mu + hh, a, a + 1))
    e("s_nop 1")
    def ur(t): return 16 + 4 * t
    def vv(t): return 24 + 4 * t
    def pp(t): return 32 + 4 * t
    def qq(t): return 40 + 4 * t
    def C(t): return TW + 4 * t
    def S(t): return TW + 8 + 4 * t
    def NC(t): return TW + 16 + 4 * t
    M = "v_mfma_f32_16x16x32_bf16 %s, %s, %s, %s"
    for t in range(2):
        e(M % (vr(ur(t)), vr(C(t)), vr(ZF), "0"))
        e(M % (vr(vv(t)), vr(S(t)), vr(ZF), "0"))
        e(M % (vr(pp(t)), vr(C(t)), vr(ZF + 8), "0"))
        e(M % (vr(qq(t)), vr(S(t)), vr(ZF + 8), "0"))
    for t in range(2):
        e(M % (vr(ur(t)), vr(S(t)), vr(ZF + 4), vr(ur(t))))
        e(M % (vr(vv(t)), vr(NC(t)), vr(ZF + 4), vr(vv(t))))
    e("s_mul_i32 s40, s5, 320")
    e("s_mul_i32 s41, s6, 20")
    e("s_add_u32 s40, s40, s41")
    e("s_lshl_b32 s40, s40, 4")
    e("s_add_u32 s40, s40, 0x%x" % WS_U)
    e("s_nop 4")
    OU = 128
    for t in range(2):
        for i in range(4):
            e("v_add_f32_dpp v%d, v%d, v%d row_shl:8 row_mask:0xf bank_mask:0xf bound_ctrl:0" % (48 + 8 * t + i, qq(t) + i, pp(t) + i))
            e("v_subrev_f32_dpp v%d, v%d, v%d row_shl:8 row_mask:0xf bank_mask:0xf bound_ctrl:0" % (52 + 8 * t + i, pp(t) + i, qq(t) + i))
    for t in range(2):
        for i in range(4):
            e("v_cvt_pk_bf16_f32 v%d, v%d, v%d" % (OU + 4 * t + i, ur(t) + i, vv(t) + i))
    for t in range(2):
        for i in range(4):
            e("ds_write_b32 v%d, v%d offset:%d" % (UW, OU + 4 * t + i, (16 * t + i) * 320))
    for t in range(2):
        for i in range(4):
            e("v_cvt_pk_bf16_f32 v%d, v%d, v%d" % (OU + 8 + 4 * t + i, 48 + 8 * t + i, 52 + 8 * t + i))
    e("s_mov_b32 exec_lo, 0x000f000f")
    e("s_mov_b32 exec_hi, 0x000f000f")
    for t in range(2):
        for i in range(4):
            e("ds_write_b32 v%d, v%d offset:%d" % (UW, OU + 8 + 4 * t + i, (16 * t + i) * 320 + 256))
    e("s_mov_b64 exec, -1")
    e("s_waitcnt lgkmcnt(0)")
    e("s_barrier")
    stamp(e, opt, 11)
    e("s_cmp_ge_u32 s4, 2")
    e("ds_read_b128 v[16:19], v%d" % UR_)
    e("ds_read_b128 v[20:23], v%d" % (UR_ + 1))
    e("s_cbranch_scc1 L1_B2")
    e("ds_read_b128 v[24:27], v%d" % (UR_ + 2))
    e("s_waitcnt lgkmcnt(0)")
    e("buffer_store_dwordx4 v[24:27], v%d, s[24:27], s40 offen%s" % (UG + 2, opt.get("ust", "")))
    e("L1_B2:")
    e("s_waitcnt lgkmcnt(0)")
    e("buffer_store_dwordx4 v[16:19], v%d, s[24:27], s40 offen%s" % (UG, opt.get("ust", "")))
    e("buffer_store_dwordx4 v[20:23], v%d, s[24:27], s40 offen%s" % (UG + 1, opt.get("ust", "")))
    stamp(e, opt, 12)
    prof_out(e, opt, 0, 12, 3, 24, vb=160)
    e("s_endpgm")

    e("L1_L:")
    if opt.get("lprio"):
        e("s_setprio %d" % opt["lprio"])
    VX = 112
    VW = 116
    VH = 119
    VH2 = 120
    VW2 = 125
    if opt.get("ls7"):
        e(opt["ls7"])
    e("v_lshrrev_b32 v6, 3, v1")
    e("v_and_b32 v7, 7, v1")
    e("v_xor_b32 v8, v7, v3")
    e("v_lshlrev_b32 v8, 4, v8")
    XS = opt.get("xs", 81920)
    e("s_mov_b32 s40, %d" % XS)
    e("v_mul_lo_u32 v9, v6, s40")
    e("v_add_u32 v9, v9, v8")
    e("s_mul_i32 s41, s7, %d" % opt.get("xr", 1280))
    for q in range(4):
        e("s_add_u32 s42, s41, %d" % (q * 8 * XS - q * 1024))
        if q % 2 == 0:
            e("v_add_u32 v%d, s42, v9" % (VX + q))
        else:
            e("v_xor_b32 v10, 64, v9")
            e("v_add_u32 v%d, s42, v10" % (VX + q))
    e("s_mul_i32 s41, s4, %d" % (16 * 3072))
    e("s_mul_i32 s42, s6, 192")
    e("s_add_u32 s41, s41, s42")
    for i in range(3):
        e("v_add_u32 v10, %d, v1" % (64 * i))
        e("v_mul_u32_u24 v11, 171, v10")
        e("v_lshrrev_b32 v11, 11, v11")
        e("v_mul_u32_u24 v12, 12, v11")
        e("v_sub_u32 v12, v10, v12")
        e("v_lshrrev_b32 v13, 3, v11")
        e("v_lshlrev_b32 v13, 1, v13")
        e("v_xor_b32 v12, v12, v13")
        e("v_mul_u32_u24 v11, 3072, v11")
        e("v_lshl_add_u32 v11, v12, 4, v11")
        e("s_sub_u32 s42, s41, %d" % (i * 1024))
        e("v_add_u32 v%d, s42, v11" % (VW + i))
    e("s_and_b32 s41, s4, 1")
    e("s_mul_i32 s42, s6, 20")
    e("s_lshl_b32 s43, s41, 3")
    e("s_add_u32 s43, s43, s42")
    e("v_add_u32 v10, s43, v6")
    e("v_mov_b32 v11, 320")
    e("v_cmp_eq_u32 vcc, 0, v10")
    e("s_lshl_b32 s43, s41, 6")
    e("v_xor_b32 v12, s43, v8")
    e("v_cndmask_b32 v10, v10, v11, vcc")
    e("v_mul_u32_u24 v10, 1280, v10")
    e("v_add_u32 v%d, v10, v12" % VH)
    e("s_add_u32 s43, s42, 16")
    e("v_add_u32 v10, s43, v6")
    e("v_and_b32 v10, 0x1ff, v10")
    e("s_cmp_eq_u32 s4, 1")
    e("s_cselect_b32 s43, 0, 1280")
    e("v_mul_lo_u32 v10, v10, s43")
    e("s_lshl_b32 s43, s4, 1")
    e("v_add_u32 v11, s43, v3")
    e("v_and_b32 v11, 7, v11")
    e("v_xor_b32 v11, v11, v7")
    e("v_lshl_add_u32 v%d, v11, 4, v10" % VH2)
    e("s_lshl_b32 s50, s4, 12")
    e("s_mul_i32 s51, s4, 3072")
    e("s_add_u32 s51, s51, %d" % W1_LDS)
    e("s_lshl_b32 s52, s4, 10")
    e("s_add_u32 s52, s52, %d" % H_LDS)
    e("s_lshl_b32 s53, s4, 9")
    e("s_add_u32 s53, s53, %d" % (H_LDS + 4096))
    stamp(e, opt, 13)
    e("s_waitcnt lgkmcnt(0)")
    stamp(e, opt, 2)
    srd(e, 8, 28, 2048 * 1280)
    srd(e, 12, 34, 640 * 3072)
    e("s_cmp_ge_u32 s4, 2")
    e("s_cselect_b32 s16, s32, s30")
    e("s_cselect_b32 s17, s33, s31")
    e("s_mov_b32 s18, %d" % (640 * 1280))
    e("s_mov_b32 s19, 0x00020000")
    srd(e, 20, 36, 1536 * 1280)
    srd(e, 24, 38, WS_END2 if opt.get("w2l") else WS_END)

    if opt.get("rot3"):
        rot_calc(e, opt)
    elif opt.get("rot"):
        e(opt["rot"])
    else:
        e("s_mov_b32 s62, 0")
    def dma(c):
        slot = c % 4
        r = []
        pre = "s_add_u32 s63, s62, %d\ns_cmp_ge_u32 s63, 10\ns_cselect_b32 s54, 10, 0\ns_sub_u32 s63, s63, s54\ns_lshl_b32 s54, s63, 7\ns_mul_i32 s55, s63, 196608\n" % c
        r.append(pre + "s_add_u32 m0, s50, %d\ns_nop 0\nbuffer_load_dwordx4 v%d, s[8:11], s54 offen lds" % (slot * 16384, VX))
        for q in range(1, 4):
            r.append("buffer_load_dwordx4 v%d, s[8:11], s54 offen offset:%d lds" % (VX + q, q * 1024))
        r.append("s_add_u32 m0, s51, %d\ns_nop 0\nbuffer_load_dwordx4 v%d, s[12:15], s55 offen lds" % (slot * 12288, VW))
        for i in range(1, 3):
            r.append("buffer_load_dwordx4 v%d, s[12:15], s55 offen offset:%d lds" % (VW + i, i * 1024))
        r.append("s_add_u32 m0, s52, %d\ns_nop 0\nbuffer_load_dwordx4 v%d, s[16:19], s54 offen lds" % (slot * 6144, VH))
        r.append("s_add_u32 m0, s53, %d\ns_mov_b32 exec_hi, 0\nbuffer_load_dwordx4 v%d, s[16:19], s54 offen lds\ns_mov_b32 exec_hi, -1" % (slot * 6144, VH2))
        return r

    issued = []
    queue = []
    if opt.get("nch"):
        NCH = opt["nch"]
    skip = opt.get("skip", [])
    for c in range(NCH):
        for li, l in enumerate(dma(c)):
            if li in skip:
                l = "\n".join(x for x in l.split("\n") if not x.startswith("buffer_load"))
                if l: e_skip = l
                queue.append((c, -1 if c < 4 else c - 3, l + "\ns_nop 0", True))
                continue
            queue.append((c, -1 if c < 4 else c - 3, l, False))
    def take(pos, budget):
        out = []
        n = 0
        while queue and queue[0][1] <= pos and n < budget:
            c, _, t, sk = queue.pop(0)
            out.append(t)
            if not sk:
                issued.append(c)
                n += 1
        return out
    def allowed_after(c):
        last = max(i for i, t in enumerate(issued) if t <= c)
        return len(issued) - 1 - last
    SPF = opt.get("spf", 0)
    spfq = list(range(10))
    def spf_one():
        spfq.pop(0)
        r = []
        for jj in range(4):
            r.append("s_buffer_load_dword s31, s[8:11], s28 offset:%d" % (jj * 81920))
        for t in range(6):
            r.append("s_buffer_load_dword s31, s[12:15], s29 offset:%d" % (t * 128))
            if opt.get("s64"):
                r.append("s_buffer_load_dword s31, s[12:15], s29 offset:%d" % (t * 128 + 64))
        for t in range(3):
            r.append("s_buffer_load_dword s31, s[16:19], s30 offset:%d" % (t * 1280))
        if opt.get("s64"):
            for jj in range(4):
                r.append("s_buffer_load_dword s31, s[8:11], s28 offset:%d" % (jj * 81920 + 64))
            for t in range(3):
                r.append("s_buffer_load_dword s31, s[16:19], s30 offset:%d" % (t * 1280 + 64))
        r.append("s_add_u32 s28, s28, 128\ns_add_u32 s29, s29, 196608\ns_add_u32 s30, s30, 128")
        return r
    if SPF:
        e("s_lshr_b32 s40, s2, 5")
        e("s_and_b32 s41, s40, 1")
        e("s_lshl_b32 s41, s41, 4")
        e("s_lshl_b32 s42, s4, 2")
        e("s_add_u32 s41, s41, s42")
        e("s_lshl_b32 s41, s41, 6")
        e("s_lshl_b32 s42, s5, 2")
        e("s_add_u32 s41, s41, s42")
        e("s_lshr_b32 s40, s40, 1")
        e("s_add_u32 s41, s41, s40")
        e("s_mul_i32 s28, s41, 1280")
        e("s_lshr_b32 s40, s2, 3")
        e("s_lshl_b32 s41, s40, 1")
        e("s_lshr_b32 s42, s4, 1")
        e("s_add_u32 s41, s41, s42")
        e("s_mul_i32 s41, s41, 3072")
        e("s_and_b32 s42, s2, 1")
        e("s_mul_i32 s43, s42, 1536")
        e("s_add_u32 s41, s41, s43")
        e("s_and_b32 s43, s4, 1")
        e("s_mul_i32 s29, s43, 768")
        e("s_add_u32 s29, s29, s41")
        e("s_mul_i32 s42, s42, 160")
        e("s_mul_i32 s40, s40, 5")
        e("s_add_u32 s42, s42, s40")
        e("s_mul_i32 s43, s43, 3")
        e("s_add_u32 s42, s42, s43")
        e("s_mul_i32 s30, s42, 1280")
        for _ in range(SPF):
            for l in spf_one():
                e(l)
        e("s_waitcnt lgkmcnt(0)")
        stamp(e, opt, 13)
        if opt.get("spb"):
            e("s_barrier")
    if PF:
        e("s_barrier")
    for l in take(-1, 9):
        e(l)
    stamp(e, opt, 3)
    if PF:
        for _ in range(opt.get("np", 1) - 1):
            e("s_barrier")
            for l in take(-1, 9):
                e(l)
    for l in take(-1, opt.get("lpre", 18) - 9 * (opt.get("np", 1) if PF else 1)):
        e(l)
    stamp(e, opt, 4)
    W2L = opt.get("w2l", 0)
    if W2L:
        e("s_lshr_b32 s43, s2, 3")
        e("s_cmp_ge_u32 s43, 30")
        e("s_cselect_b32 s47, 30, 0")
        e("s_sub_u32 s43, s43, s47")
        e("s_lshl_b32 s48, s43, 4")
        e("s_lshl_b32 s47, s4, 2")
        e("s_add_u32 s48, s48, s47")
        e("s_and_b32 s49, s2, 1")
        e("s_mul_i32 s49, s49, 640")
        e("s_and_b32 s47, s2, 7")
        e("s_mul_i32 s47, s47, 0x%x" % W2L_SZ)
        e("s_add_u32 s47, s47, 0x%x" % WS_W2L)
        e("v_lshrrev_b32 v10, 2, v1")
        e("v_mul_u32_u24 v10, 1280, v10")
        e("v_and_b32 v11, 3, v1")
        e("v_lshl_add_u32 v%d, v11, 4, v10" % VW2)
        e("s_lshl_b32 s56, s4, 11")
        e("s_add_u32 s59, s56, %d" % (W1_LDS + 2 * 12288))
        e("s_add_u32 s56, s56, %d" % W2S_LDS)
        e("s_lshl_b32 s57, s4, 12")
        e("s_add_u32 s57, s57, %d" % (X_LDS + 2 * 16384))
        e("s_add_u32 s58, s57, 2048")
        e("v_lshrrev_b32 v8, 2, v2")
        e("v_lshl_add_u32 v8, v3, 2, v8")
        e("v_lshlrev_b32 v8, 6, v8")
        e("v_and_b32 v9, 3, v2")
        e("v_lshl_add_u32 v8, v9, 3, v8")
        for r in range(4):
            e("v_add_u32 v%d, s%d, v8" % (12 + r, 56 + r))
        e("v_lshlrev_b32 v9, 4, v1")
    else:
        e("s_cmp_ge_u32 s2, 240")
        e("s_cselect_b32 s43, 240, 0")
        e("s_sub_u32 s43, s2, s43")
        e("s_mul_i32 s47, s43, 1366")
        e("s_lshr_b32 s47, s47, 16")
        e("s_mul_i32 s48, s47, 48")
        e("s_sub_u32 s48, s43, s48")
        e("v_lshrrev_b32 v10, 2, v1")
        e("v_mul_u32_u24 v10, 1280, v10")
        e("v_and_b32 v11, 3, v1")
        e("v_lshl_add_u32 v10, v11, 4, v10")
        e("s_mul_i32 s43, s48, %d" % (32 * 1280))
        e("s_lshl_b32 s49, s47, 8")
        e("s_add_u32 s43, s43, s49")
        e("s_lshl_b32 s49, s4, 6")
        e("s_add_u32 s43, s43, s49")
        e("v_add_u32 v%d, s43, v10" % VW2)
        e("s_lshl_b32 s56, s4, 11")
        e("s_add_u32 s56, s56, %d" % W2S_LDS)
        e("s_mov_b32 s57, %d" % (16 * 1280 - 1024))
        e("v_lshrrev_b32 v8, 2, v2")
        e("v_lshl_add_u32 v8, v3, 2, v8")
        e("v_lshlrev_b32 v8, 6, v8")
        e("v_and_b32 v9, 3, v2")
        e("v_lshl_add_u32 v8, v9, 3, v8")
        e("v_add_u32 v8, s56, v8")
        e("v_lshlrev_b32 v9, 4, v1")
        e("s_lshl_b32 s40, s47, 3")
        e("s_lshl_b32 s41, s4, 1")
        e("s_add_u32 s40, s40, s41")
        e("s_mul_i32 s40, s40, 48")
        e("s_add_u32 s40, s40, s48")
        e("s_lshl_b32 s40, s40, 10")
        e("s_add_u32 s40, s40, 0x%x" % WS_W2T)
        e("s_add_u32 s41, s40, %d" % (48 * 1024))
    stamp(e, opt, 5)
    e("s_waitcnt vmcnt(%d)" % allowed_after(0))
    e("s_barrier")
    stamp(e, opt, 6)
    W2F = 128
    w2pos = opt.get("w2pos", NCH - 3)
    for c in range(NCH - 1):
        for l in take(c, opt.get("lb0", 9) if c == 0 else opt.get("lb", 12)):
            e(l)
        if SPF and spfq:
            for l in spf_one():
                e(l)
        if c == w2pos and W2L:
            assert not queue and c + 3 == NCH
            for r in range(4):
                e("s_add_u32 s40, s48, %d" % r)
                e("s_mul_i32 s41, s40, 6554")
                e("s_lshr_b32 s41, s41, 16")
                e("s_mul_i32 s42, s41, 10")
                e("s_sub_u32 s42, s40, s42")
                e("s_mul_i32 s43, s41, 40960")
                e("s_lshl_b32 s44, s42, 6")
                e("s_add_u32 s43, s43, s44")
                e("s_add_u32 s43, s43, s49")
                e("s_add_u32 s44, s43, %d" % (16 * 1280 - 1024))
                e("s_mov_b32 m0, s%d" % (56 + r))
                e("s_mul_i32 s42, s42, 96")
                e("buffer_load_dwordx4 v%d, s[20:23], s43 offen lds" % VW2)
                e("buffer_load_dwordx4 v%d, s[20:23], s44 offen offset:1024 lds" % VW2)
                e("s_add_u32 s42, s42, s41")
                e("s_lshl_b32 s42, s42, 10")
                e("s_add_u32 s%d, s42, s47" % (64 + r))
            issued.extend([99] * 8)
        elif c == w2pos:
            assert not queue
            e("s_mov_b32 m0, s56")
            e("s_nop 0")
            e("buffer_load_dwordx4 v%d, s[20:23], 0 offen lds" % VW2)
            e("buffer_load_dwordx4 v%d, s[20:23], s57 offen offset:1024 lds" % VW2)
            issued.extend([99, 99])
        e("s_waitcnt vmcnt(%d)" % allowed_after(c + 1))
        e("s_barrier")
        if c == 0: stamp(e, opt, 10)
        if c == 1: stamp(e, opt, 12)
        if c == (3 if NCH == 10 else 9): stamp(e, opt, 7)
        if c == (6 if NCH == 10 else 14): stamp(e, opt, 8)
    assert not queue
    stamp(e, opt, 9)
    if W2L:
        e("s_barrier")
        e("s_waitcnt vmcnt(0)")
        for r in range(4):
            for t in range(2):
                for hh in range(2):
                    e("ds_read_b64_tr_b16 %s, v%d offset:%d" % (vr(W2F + 8 * r + 4 * t + 2 * hh, 2), 12 + r, hh * 1024 + t * 32))
            e("s_add_u32 s40, s%d, %d" % (64 + r, 48 * 1024))
            e("s_waitcnt lgkmcnt(0)")
            e("buffer_store_dwordx4 %s, v9, s[24:27], s%d offen%s" % (vr(W2F + 8 * r), 64 + r, opt.get("wst", "")))
            e("buffer_store_dwordx4 %s, v9, s[24:27], s40 offen%s" % (vr(W2F + 8 * r + 4), opt.get("wst", "")))
    else:
        e("s_waitcnt vmcnt(0)")
        for t in range(2):
            for hh in range(2):
                e("ds_read_b64_tr_b16 %s, v8 offset:%d" % (vr(W2F + 4 * t + 2 * hh, 2), hh * 1024 + t * 32))
        e("s_waitcnt lgkmcnt(0)")
        e("buffer_store_dwordx4 %s, v9, s[24:27], s40 offen%s" % (vr(W2F), opt.get("wst", "")))
        e("buffer_store_dwordx4 %s, v9, s[24:27], s41 offen%s" % (vr(W2F + 4), opt.get("wst", "")))
    stamp(e, opt, 11)
    prof_out(e, opt, 0, 12, 3, 24, vb=160)
    e("L1_END:")
    e("s_endpgm")
    return e.text()


HEAD = """; Kernarg layout for this problem (88 bytes, ptrs only, base s[0:1]):
"""


def kernel_wrap(name, body, vgpr=256, sgpr=102, accum=None):
    accum = accum or vgpr
    txt = ".globl %s\n.p2align 8\n.type %s,@function\n%s:\n%s" % (name, name, name, body)
    desc = """.p2align 6
.amdhsa_kernel %s
  .amdhsa_next_free_vgpr %d
  .amdhsa_next_free_sgpr %d
  .amdhsa_accum_offset %d
  .amdhsa_group_segment_fixed_size 0
  .amdhsa_kernarg_size 88
  .amdhsa_user_sgpr_count 2
  .amdhsa_user_sgpr_kernarg_segment_ptr 1
  .amdhsa_system_sgpr_workgroup_id_x 1
.end_amdhsa_kernel
""" % (name, vgpr, sgpr, accum)
    return txt, desc


DEF = {"hst": "", "rbm": 2, "sym": 1, "wst": " sc1", "ust": " sc1", "pre2": 2, "hb2": 5, "yb2": 4, "xc2": 9, "pf": 0, "lprio": 3, "lpre": 18, "lb0": 9, "lb": 12, "rot3": [0, 0, 3, 5]}


def build(opt=None, only_l1=False):
    global PROF_ON
    o = dict(DEF)
    o.update(opt or {})
    opt = o
    PROF_ON = bool(opt.get("prof"))
    k1 = KN + "_kernel"
    k2 = "fnet_l2_kernel"
    launches = ["; @launch kernel=%s grid=(256,1,1) block=(768,1,1) lds=%d" % (k1, L1_LDS)]
    t1, d1 = kernel_wrap(k1, gen_l1(opt), vgpr=168)
    txt = [t1]
    desc = [d1]
    if not only_l1:
        from gen2 import gen_l2, L2_LDS, L2_BLOCK, L2_VGPR, L2_ACC
        launches.append("; @launch kernel=%s grid=(256,1,1) block=(%d,1,1) lds=%d" % (k2, L2_BLOCK, L2_LDS))
        if opt.get("dup2"):
            launches.append(launches[-1])
        t2, d2 = kernel_wrap(k2, gen_l2(opt), vgpr=L2_VGPR, accum=L2_ACC)
        txt.append(t2)
        desc.append(d2)
    s = HEAD + "\n".join(launches) + "\n.amdgcn_target \"amdgcn-amd-amdhsa--gfx950\"\n.text\n" + "\n".join(txt)
    s += ".section .rodata,\"a\"\n" + "".join(desc)
    return s


if __name__ == "__main__":
    only = len(sys.argv) > 1 and sys.argv[1] == "l1"
    s = build({}, only_l1=only)
    out = "cdna_kernels/%s.s" % KN if not only else "l1.s"
    open(out, "w").write(s)
    print("wrote", out, len(s))
```

```python
from gen import E, vr, srd, interleave, stamp, prof_out, WS_H, WS_U, WS_W2T, WS_END, WS_W2L, W2L_SZ, WS_END2

NS = 6
SLOT = 20480
U_LDS = NS * SLOT
L2_LDS = U_LDS + 20480
L2_BLOCK = 256
L2_VGPR = 512
L2_ACC = 256


def ar(b, n=4):
    return "a[%d:%d]" % (b, b + n - 1)


def gen_l2(opt):
    e = E()
    NCH = 12
    M = "v_mfma_f32_16x16x32_bf16 %s, %s, %s, %s"
    e("s_cmp_ge_u32 s2, 256")
    e("s_cbranch_scc1 L2_END")
    stamp(e, opt, 0, real=True)
    stamp(e, opt, 1)
    e("s_load_dwordx2 s[28:29], s[0:1], 0")
    e("s_load_dwordx2 s[30:31], s[0:1], 64")
    e("s_load_dwordx2 s[32:33], s[0:1], 80")
    e("v_lshrrev_b32 v2, 6, v0")
    e("v_and_b32 v1, 63, v0")
    e("v_readfirstlane_b32 s3, v2")
    e("s_and_b32 s40, s2, 7")
    e("s_lshr_b32 s41, s2, 3")
    if opt.get("sym"):
        e("s_lshr_b32 s43, s40, 1")
        e("s_and_b32 s42, s41, 7")
        e("s_lshl_b32 s44, s43, 2")
        e("s_add_u32 s4, s44, s42")
        e("s_add_u32 s4, s4, 1")
        e("s_cmp_eq_u32 s4, 16")
        e("s_cselect_b32 s4, 0, s4")
        e("s_sub_u32 s45, 24, s44")
        e("s_add_u32 s45, s45, s42")
        e("s_cmp_ge_u32 s42, 4")
        e("s_cselect_b32 s4, s45, s4")
        e("s_lshr_b32 s42, s41, 3")
        e("s_and_b32 s43, s40, 1")
        e("s_add_u32 s44, s42, 4")
        e("s_cmp_lt_u32 s42, 2")
        e("s_cselect_b32 s44, s42, s44")
        e("s_add_u32 s45, s42, 2")
        e("s_cmp_eq_u32 s43, 1")
        e("s_cselect_b32 s5, s45, s44")
    else:
        e("s_lshr_b32 s4, s40, 1")
        e("s_lshl_b32 s4, s4, 3")
        e("s_and_b32 s42, s41, 7")
        e("s_add_u32 s4, s4, s42")
        e("s_and_b32 s5, s40, 1")
        e("s_lshl_b32 s5, s5, 2")
        e("s_lshr_b32 s42, s41, 3")
        e("s_add_u32 s5, s5, s42")
    e("s_lshr_b32 s6, s3, 1")
    e("s_and_b32 s7, s3, 1")
    e("v_and_b32 v2, 15, v1")
    e("v_lshrrev_b32 v3, 4, v1")
    e("v_lshlrev_b32 v4, 4, v1")
    e("s_mul_i32 s35, s5, 80")
    e("s_sub_u32 s40, 640, s35")
    e("s_sub_u32 s41, 32, s4")
    e("s_and_b32 s41, s41, 31")
    e("s_cmp_eq_u32 s4, 0")
    e("s_cselect_b32 s42, 64, 63")
    e("s_cmp_ge_u32 s5, 4")
    e("s_cselect_b32 s34, -1, 1")
    e("s_cselect_b32 s35, s40, s35")
    e("s_cselect_b32 s36, s41, s4")
    e("s_cselect_b32 s37, s42, 0")
    e("v_mul_lo_u32 v5, v2, s34")
    e("v_mul_u32_u24 v6, 5120, v3")
    e("s_lshl_b32 s40, s34, 4")
    e("s_mov_b32 s41, s35")
    for n in range(5):
        e("v_add_u32 v7, s41, v5")
        if n == 0:
            e("v_cmp_ne_u32 vcc, 320, v7")
            e("s_nop 1")
            e("v_cndmask_b32 v7, 0, v7, vcc")
        e("v_lshl_add_u32 v%d, v7, 4, v6" % (8 + n))
        if n < 4:
            e("s_add_u32 s41, s41, s40")
    e("s_lshl_b32 s38, s36, 4")
    e("s_lshl_b32 s40, s3, 2")
    e("s_add_u32 s38, s38, s40")
    e("s_mul_i32 s38, s38, 5120")
    e("s_add_u32 s38, s38, 0x%x" % WS_U)
    if opt.get("w2l"):
        e("s_and_b32 s40, s5, 3")
        e("s_mul_i32 s40, s40, 5")
        e("s_and_b32 s43, s2, 7")
        e("s_mul_i32 s43, s43, 0x%x" % W2L_SZ)
        e("s_add_u32 s43, s43, 0x%x" % WS_W2L)
        e("s_add_u32 s41, s40, s3")
        e("s_mul_i32 s20, s41, 49152")
        e("s_add_u32 s20, s20, s43")
        e("s_add_u32 s41, s40, 4")
        e("s_mul_i32 s21, s41, 49152")
        e("s_lshl_b32 s41, s3, 10")
        e("s_add_u32 s21, s21, s41")
        e("s_add_u32 s21, s21, s43")
    else:
        e("s_mul_i32 s40, s5, 5")
        e("s_add_u32 s41, s40, s3")
        e("s_mul_i32 s20, s41, 49152")
        e("s_add_u32 s20, s20, 0x%x" % WS_W2T)
        e("s_add_u32 s41, s40, 4")
        e("s_mul_i32 s21, s41, 49152")
        e("s_lshl_b32 s41, s3, 10")
        e("s_add_u32 s21, s21, s41")
        e("s_add_u32 s21, s21, 0x%x" % WS_W2T)
    e("s_lshl_b32 s40, s6, 5")
    e("s_add_u32 s40, s40, s4")
    e("s_lshl_b32 s40, s40, 1")
    e("s_add_u32 s40, s40, s7")
    e("s_mul_i32 s22, s40, 49152")
    e("s_lshl_b32 s23, s3, 12")
    e("s_lshl_b32 s24, s3, 10")
    e("s_add_u32 s24, s24, 16384")
    e("s_mov_b32 s25, 0")
    if opt.get("krot2"):
        e(opt["krot2"])
    e("s_mov_b32 s26, s25")
    e("s_waitcnt lgkmcnt(0)")
    stamp(e, opt, 2)
    srd(e, 8, 32, WS_END2 if opt.get("w2l") else WS_END)
    srd(e, 12, 28, 2048 * 1280)
    srd(e, 16, 30, 2048 * 1280)

    HR = 0
    def hreg(c, q): return HR + (c % 7) * 16 + q * 4

    def dma_w(c):
        slot = c % NS
        r = []
        r.append("s_add_u32 s40, s20, s25\ns_add_u32 m0, s23, %d\ns_add_u32 s41, s21, s25" % (slot * SLOT))
        for q in range(4):
            r.append("buffer_load_dwordx4 v4, s[8:11], s40 offen offset:%d lds" % (q * 1024))
        r.append("s_add_u32 m0, s24, %d\ns_add_u32 s25, s25, 4096\nbuffer_load_dwordx4 v4, s[8:11], s41 offen lds" % (slot * SLOT))
        r.append("s_cmp_eq_u32 s25, 49152\ns_cselect_b32 s25, 0, s25")
        return r

    def ld_h(c):
        r = []
        r.append("s_add_u32 s42, s22, s26\ns_add_u32 s26, s26, 4096")
        for q in range(4):
            r.append("buffer_load_dwordx4 %s, v4, s[8:11], s42 offen offset:%d" % (ar(hreg(c, q)), q * 1024))
        r.append("s_cmp_eq_u32 s26, 49152\ns_cselect_b32 s26, 0, s26")
        return r

    YL = opt.get("ylate", 0)
    e("s_lshl_b32 s39, s3, 10")
    e("s_add_u32 s39, s39, %d" % U_LDS)
    uload = ["s_add_u32 m0, s39, %d\ns_nop 0\nbuffer_load_dwordx4 v%d, s[8:11], s38 offen lds" % (n * 4096, 8 + n) for n in range(5)]
    if not YL:
        for l in uload:
            e(l)
    stamp(e, opt, 3)
    PRE = opt.get("pre2", 2)
    YB = opt.get("yb2", 9)
    HB = opt.get("hb2", 6)
    issued = [] if YL else [-1] * 5
    queue = []
    for c in range(NCH):
        ew = -2 if c < NS else 2 * (c - NS) + 1
        eh = -2 if c < 7 else 2 * (c - 7) + 2
        if YL and c == YL - opt.get("yuo", 0):
            for l in uload:
                queue.append((c, -2, l))
        for l in dma_w(c):
            queue.append((c, ew, l))
        for l in ld_h(c):
            queue.append((c, eh, l))
    def nl(t): return sum(1 for x in t.split("\n") if x.startswith("buffer_load"))
    def take(pos, budget, maxchunk=99):
        out = []
        n = 0
        while queue and queue[0][1] <= pos and queue[0][0] <= maxchunk:
            k = nl(queue[0][2])
            if n + k > budget and k > 0:
                break
            c, _, t = queue.pop(0)
            out.append(t)
            issued.extend([c] * k)
            n += k
        return out
    def allowed_after(c):
        assert not any(qq[0] <= c and nl(qq[2]) > 0 for qq in queue), ("late loads", c)
        last = max(i for i, t in enumerate(issued) if t <= c)
        return len(issued) - 1 - last
    for l in take(-2, 999, PRE - 1):
        e(l)
    stamp(e, opt, 4)
    AO = 16
    AY = 36
    FR = [56, 96]
    WQ = 136
    XP = 152
    VL = 14
    def fw(s, k, n): return FR[s] + (k * 5 + n) * 4

    e("s_lshl_b32 s40, s7, 5")
    e("s_add_u32 s40, s40, s6")
    e("v_lshlrev_b32 v5, 1, v2")
    e("v_add_u32 v5, s40, v5")
    e("v_mul_lo_u32 v5, v5, s34")
    e("v_add_u32 v5, s37, v5")
    e("v_and_b32 v5, 63, v5")
    e("v_cvt_f32_u32 v5, v5")
    e("v_mul_f32 v5, 0x3c800000, v5")
    e("v_lshlrev_b32 v6, 2, v3")
    e("v_cvt_f32_u32 v6, v6")
    import struct
    for kk in range(4):
        for q in range(4):
            lit = struct.unpack("<I", struct.pack("<f", float(16 * kk + q)))[0]
            e("v_add_f32 v7, 0x%x, v6" % lit)
            e("v_mul_f32 v7, v7, v5")
            e("v_cos_f32 v%d, v7" % (176 + q))
            e("v_sin_f32 v%d, v7" % (180 + q))
        e("s_nop 0")
        for q in range(4):
            e("v_cvt_pk_bf16_f32 v%d, v%d, -v%d" % (WQ + kk * 4 + q, 176 + q, 180 + q))
        if YL and kk == opt.get("ytw", 1):
            for l in take(-1, opt.get("yl0", 9)):
                e(l)
    for i in range(40):
        e("v_mov_b32 v%d, 0" % (AO + i))
    e("v_mov_b32 v%d, v4" % VL)
    e("v_add_u32 v%d, %d, v4" % (VL + 1, 3 * SLOT))
    e("v_add_u32 v13, %d, v4" % U_LDS)

    def w_reads(c, half, s):
        slot = c % NS
        r = []
        for k in range(2):
            for n in range(5):
                r.append("ds_read_b128 %s, v%d offset:%d" % (vr(fw(s, k, n)), VL + slot // 3, (slot % 3) * SLOT + n * 4096 + (2 * half + k) * 1024))
        return r

    def o_mfma(c, half, s):
        m = []
        for k in range(2):
            for n in range(5):
                m.append(M % (vr(AO + 4 * n), vr(fw(s, k, n)), ar(hreg(c, 2 * half + k)), vr(AO + 4 * n)))
        return m

    if YL:
        stamp(e, opt, 5)
        e("s_waitcnt vmcnt(%d)" % allowed_after(0))
        e("s_barrier")
        stamp(e, opt, 6)
        for l in w_reads(0, 0, 0) + take(-1, opt.get("ys1", 2)):
            e(l)
        e("s_waitcnt lgkmcnt(0)")
    elif opt.get("ys"):
        stamp(e, opt, 5)
        e("s_waitcnt vmcnt(%d)" % allowed_after(-1))
        e("s_barrier")
        stamp(e, opt, 6)
        for kk in range(4):
            for n in range(5):
                e("ds_read_b128 %s, v13 offset:%d" % (vr(fw(kk // 2, kk % 2, n)), n * 4096 + kk * 1024))
        for l in take(-1, opt.get("ys0", 2)):
            e(l)
        e("s_waitcnt lgkmcnt(10)")
        ym = []
        for kk in range(2):
            for n in range(5):
                ym.append(M % (vr(AY + 4 * n), vr(fw(0, kk, n)), vr(WQ + 4 * kk), vr(AY + 4 * n)))
        for l in interleave(ym, take(-1, YB // 2), per=1):
            e(l)
        e("s_waitcnt lgkmcnt(0)")
        ym = []
        for kk in range(2, 4):
            for n in range(5):
                ym.append(M % (vr(AY + 4 * n), vr(fw(1, kk - 2, n)), vr(WQ + 4 * kk), vr(AY + 4 * n)))
        for l in interleave(ym, take(-1, YB - YB // 2), per=1):
            e(l)
        e("s_waitcnt vmcnt(%d)" % allowed_after(0))
        e("s_barrier")
        for l in w_reads(0, 0, 0) + take(-1, opt.get("ys1", 2)):
            e(l)
        e("s_waitcnt lgkmcnt(0)")
    else:
        stamp(e, opt, 5)
        e("s_waitcnt vmcnt(%d)" % allowed_after(0))
        e("s_barrier")
        stamp(e, opt, 6)
        for kk in range(4):
            for n in range(5):
                e("ds_read_b128 %s, v13 offset:%d" % (vr(fw(kk // 2, kk % 2, n)), n * 4096 + kk * 1024))
        e("s_waitcnt lgkmcnt(10)")
        ym = []
        for kk in range(2):
            for n in range(5):
                ym.append(M % (vr(AY + 4 * n), vr(fw(0, kk, n)), vr(WQ + 4 * kk), vr(AY + 4 * n)))
        for l in interleave(ym, take(-1, YB // 2), per=1):
            e(l)
        e("s_waitcnt lgkmcnt(0)")
        ym = []
        for kk in range(2, 4):
            for n in range(5):
                ym.append(M % (vr(AY + 4 * n), vr(fw(1, kk - 2, n)), vr(WQ + 4 * kk), vr(AY + 4 * n)))
        for l in interleave(ym, w_reads(0, 0, 0) + take(-1, YB - YB // 2), per=2):
            e(l)
        e("s_waitcnt lgkmcnt(0)")

    stamp(e, opt, 7)
    def x_setup():
        r = []
        s = []
        s.append("s_lshl_b32 s43, s7, 10\ns_lshl_b32 s44, s6, 5\ns_add_u32 s43, s43, s44\ns_add_u32 s43, s43, s4\ns_mul_i32 s43, s43, 1280\ns_mul_i32 s44, s5, 160\ns_add_u32 s43, s43, s44")
        r += s
        for rr in range(3):
            r.append("v_add_u32 v184, %d, v1\nv_mul_u32_u24 v185, 205, v184\nv_lshrrev_b32 v185, 11, v185\nv_mul_u32_u24 v186, 10, v185\nv_sub_u32 v186, v184, v186" % (64 * rr))
            r.append("v_mul_u32_u24 v187, 0x14000, v185\nv_lshl_add_u32 v%d, v186, 4, v187\nv_mul_u32_u24 v187, 336, v185\nv_lshl_add_u32 v%d, v186, 5, v187" % (176 + rr, 180 + rr))
        for rr in range(3):
            if rr == 2:
                r.append("s_mov_b32 exec_hi, 0\nbuffer_load_dwordx4 %s, v%d, s[12:15], s43 offen\ns_mov_b32 exec_hi, -1" % (vr(XP + 4 * rr), 176 + rr))
            else:
                r.append("buffer_load_dwordx4 %s, v%d, s[12:15], s43 offen" % (vr(XP + 4 * rr), 176 + rr))
        return r

    HB0 = HB
    for c in range(NCH):
        HB = opt.get("hbe", HB0) if c < opt.get("hbn", 0) else HB0
        oth = w_reads(c, 1, 1) + take(2 * c, HB)
        for l in interleave(o_mfma(c, 0, 0), oth, per=2):
            e(l)
        e("s_waitcnt lgkmcnt(0)")
        if c < NCH - 1:
            e("s_waitcnt vmcnt(%d)" % min(63, allowed_after(c + 1)))
            e("s_barrier")
            oth = w_reads(c + 1, 0, 0) + take(2 * c + 1, HB)
            if c == opt.get("xc2", 7):
                oth = oth + x_setup()
                issued.extend([99] * 3)
            for l in interleave(o_mfma(c, 1, 1), oth, per=2):
                e(l)
            e("s_waitcnt lgkmcnt(0)")
            if YL and c == YL - 1:
                F2 = 216
                def fy(kk, n): return fw(1, kk, n) if kk < 2 else F2 + ((kk - 2) * 5 + n) * 4
                for kk in range(4):
                    for n in range(5):
                        e("ds_read_b128 %s, v13 offset:%d" % (vr(fy(kk, n)), n * 4096 + kk * 1024))
                for l in take(2 * c + 1, opt.get("yl1", 2)):
                    e(l)
                e("s_waitcnt lgkmcnt(10)")
                for part in range(2):
                    ym = []
                    for kk in range(2 * part, 2 * part + 2):
                        for n in range(5):
                            ym.append(M % (vr(AY + 4 * n), vr(fy(kk, n)), vr(WQ + 4 * kk), vr(AY + 4 * n)))
                    for l in interleave(ym, take(2 * c + 1, opt.get("yl2", 2)), per=2):
                        e(l)
                    if part == 0:
                        e("s_waitcnt lgkmcnt(0)")
            if c == 3: stamp(e, opt, 8)
            if c == 7: stamp(e, opt, 9)
        else:
            for l in o_mfma(c, 1, 1):
                e(l)
    assert not queue, queue
    stamp(e, opt, 10)
    e("s_cmp_eq_u32 s5, 0")
    e("s_cselect_b32 s44, 0xffff, 0")
    e("s_mov_b32 s45, 0")
    e("s_mov_b32 s40, 0xbfb8aa3b")
    e("v_mov_b32 v188, s40")
    e("v_mov_b32 v189, s40")
    e("v_mov_b32 v190, 1.0")
    e("v_mov_b32 v191, 1.0")
    e("v_cndmask_b32_e64 v%d, v%d, 0, s[44:45]" % (AY, AY))
    e("s_mul_i32 s46, s3, %d" % SLOT)
    e("v_mul_u32_u24 v5, 336, v2")
    e("v_lshl_add_u32 v5, v3, 4, v5")
    e("v_add_u32 v5, s46, v5")
    for rr in range(3):
        e("v_add_u32 v%d, s46, v%d" % (180 + rr, 180 + rr))
    Z = 56
    e("s_nop 1")
    for k in range(10):
        e("v_pk_mul_f32 %s, %s, v[188:189]" % (vr(Z + 2 * k, 2), vr(AO + 2 * k, 2)))
    for k in range(20):
        e("v_exp_f32 v%d, v%d" % (Z + k, Z + k))
    for k in range(10):
        e("v_pk_mul_f32 %s, %s, %s" % (vr(AY + 2 * k, 2), vr(AY + 2 * k, 2), vr(AO + 2 * k, 2)))
    for k in range(10):
        e("v_pk_add_f32 %s, %s, v[190:191]" % (vr(Z + 2 * k, 2), vr(Z + 2 * k, 2)))
    for k in range(20):
        e("v_rcp_f32 v%d, v%d" % (Z + k, Z + k))
    e("s_nop 0")
    for n in range(5):
        for hh in range(2):
            k = 2 * n + hh
            e("v_pk_mul_f32 %s, %s, %s" % (vr(AY + 2 * k, 2), vr(AY + 2 * k, 2), vr(Z + 2 * k, 2)))
        e("ds_write_b128 v5, %s offset:%d" % (vr(AY + 4 * n), n * 64))
    e("s_waitcnt lgkmcnt(0)")
    stamp(e, opt, 11)
    PB = 96
    for rr in range(3):
        e("ds_read_b128 %s, v%d" % (vr(PB + 8 * rr), 180 + rr))
        e("ds_read_b128 %s, v%d offset:16" % (vr(PB + 8 * rr + 4), 180 + rr))
    XU = 192
    e("s_waitcnt vmcnt(0)")
    for rr in range(3):
        for k in range(4):
            e("v_lshlrev_b32 v%d, 16, v%d" % (XU + 8 * rr + 2 * k, XP + 4 * rr + k))
            e("v_and_b32 v%d, 0xffff0000, v%d" % (XU + 8 * rr + 2 * k + 1, XP + 4 * rr + k))
    e("s_waitcnt lgkmcnt(0)")
    for rr in range(3):
        for k in range(4):
            e("v_pk_add_f32 %s, %s, %s" % (vr(XU + 8 * rr + 2 * k, 2), vr(XU + 8 * rr + 2 * k, 2), vr(PB + 8 * rr + 2 * k, 2)))
        for k in range(4):
            e("v_cvt_pk_bf16_f32 v%d, v%d, v%d" % (XP + 4 * rr + k, XU + 8 * rr + 2 * k, XU + 8 * rr + 2 * k + 1))
        if rr == 2:
            e("s_mov_b32 exec_hi, 0")
        e("buffer_store_dwordx4 %s, v%d, s[16:19], s43 offen" % (vr(XP + 4 * rr), 176 + rr))
    stamp(e, opt, 12)
    prof_out(e, opt, 1, 4, 3, 8)
    e("L2_END:")
    e("s_endpgm")
    return e.text()
```

```python
import sys
KN = "recurrent_scan__spectral_fnet__dense_activation_silu__prompt"

WS_H = 0
WS_U = 0x600000
WS_W2T = 0x880000
WS_END = 0xA60000
WS_W2L = 0x1000000
W2L_SZ = 0xF0000
WS_END2 = WS_W2L + 8 * W2L_SZ


PROF_ON = False


class E:
    def __init__(self):
        self.L = []

    def __call__(self, s):
        for x in s.split("\n"):
            x = x.strip()
            if x:
                self.L.append(x)

    def text(self):
        return "\n".join(("" if l.endswith(":") else "  ") + l for l in self.L) + "\n"


def vr(b, n=4):
    return "v[%d:%d]" % (b, b + n - 1)


def srd(e, d, lo, nbytes):
    if nbytes == WS_END and PROF_ON:
        nbytes = 0x1000000
    e("s_mov_b32 s%d, s%d" % (d, lo))
    e("s_mov_b32 s%d, s%d" % (d + 1, lo + 1))
    e("s_mov_b32 s%d, 0x%x" % (d + 2, nbytes))
    e("s_mov_b32 s%d, 0x00020000" % (d + 3))


PROF_BASE = 0xB00000


def stamp(e, opt, i, real=False):
    if opt.get("prof"):
        e("%s s[%d:%d]" % ("s_memrealtime" if real else "s_memtime", 70 + 2 * i, 71 + 2 * i))


def prof_out(e, opt, kern, nwaves, wave_sreg, srd0, n=16, vb=240):
    if not opt.get("prof"):
        return
    e("s_mov_b64 exec, -1")
    e("s_waitcnt vmcnt(0)")
    stamp(e, opt, n - 2)
    stamp(e, opt, n - 1, real=True)
    e("s_waitcnt lgkmcnt(0)")
    e("s_mul_i32 s68, s2, %d" % nwaves)
    e("s_add_u32 s68, s68, s%d" % wave_sreg)
    e("s_lshl_b32 s68, s68, 6")
    e("s_add_u32 s68, s68, 0x%x" % (PROF_BASE + kern * 0x40000))
    e("v_mov_b32 v%d, 0" % (vb + 4))
    for i in range(n):
        e("v_mov_b32 v%d, s%d" % (vb + (i % 4), 70 + 2 * i))
        if i % 4 == 3:
            e("s_mov_b64 exec, 1")
            e("buffer_store_dwordx4 v[%d:%d], v%d, s[%d:%d], s68 offen offset:%d" % (vb, vb + 3, vb + 4, srd0, srd0 + 3, (i // 4) * 16))
            e("s_waitcnt vmcnt(0)")
            e("s_mov_b64 exec, -1")


def interleave(mf, other, per=2, start=0):
    out = []
    o = list(other)
    for i, m in enumerate(mf):
        out.append(m)
        if i >= start:
            for _ in range(per):
                if o:
                    out.append(o.pop(0))
    out += o
    return out


X_LDS = 0
W1_LDS = 65536
H_LDS = 114688
W2S_LDS = 139264
ST_LDS = 147456
CS_LDS = 148480
L1_LDS = 148864


def rot_calc(e, opt):
    a, b, q, p = opt["rot3"]
    e("s_lshr_b32 s40, s2, 5")
    e("s_mul_i32 s40, s40, %d" % a)
    e("s_lshr_b32 s41, s2, 3")
    e("s_and_b32 s41, s41, 3")
    e("s_mul_i32 s41, s41, %d" % b)
    e("s_add_u32 s40, s40, s41")
    e("s_lshr_b32 s41, s2, 1")
    e("s_and_b32 s41, s41, 3")
    e("s_mul_i32 s41, s41, %d" % q)
    e("s_add_u32 s40, s40, s41")
    e("s_and_b32 s41, s2, 1")
    e("s_mul_i32 s41, s41, %d" % p)
    e("s_add_u32 s40, s40, s41")
    e("s_mul_i32 s41, s40, 205")
    e("s_lshr_b32 s41, s41, 11")
    e("s_mul_i32 s41, s41, 10")
    e("s_sub_u32 s62, s40, s41")


def gen_l1(opt):
    e = E()
    NCH = 10
    e("s_cmp_ge_u32 s2, 256")
    e("s_cbranch_scc1 L1_END")
    stamp(e, opt, 0, real=True)
    stamp(e, opt, 1)
    e("s_load_dwordx2 s[28:29], s[0:1], 0")
    e("s_load_dwordx2 s[30:31], s[0:1], 24")
    e("s_load_dwordx2 s[32:33], s[0:1], 32")
    e("s_load_dwordx2 s[34:35], s[0:1], 48")
    e("s_load_dwordx2 s[36:37], s[0:1], 56")
    e("s_load_dwordx2 s[38:39], s[0:1], 80")
    e("v_lshrrev_b32 v2, 6, v0")
    e("v_and_b32 v1, 63, v0")
    e("v_readfirstlane_b32 s3, v2")
    e("s_and_b32 s40, s2, 7")
    e("s_lshr_b32 s41, s2, 3")
    if opt.get("rbm") == 2:
        e("s_lshr_b32 s5, s40, 1")
        e("s_sub_u32 s42, 7, s5")
        e("s_bitcmp1_b32 s41, 0")
        e("s_cselect_b32 s5, s42, s5")
        e("s_and_b32 s42, s41, 2")
        e("s_lshl_b32 s42, s42, 2")
        e("s_add_u32 s5, s5, s42")
    elif opt.get("rbm"):
        e("s_and_b32 s5, s40, 6")
        e("s_and_b32 s42, s41, 1")
        e("s_add_u32 s5, s5, s42")
        e("s_and_b32 s42, s41, 2")
        e("s_lshl_b32 s42, s42, 2")
        e("s_add_u32 s5, s5, s42")
    else:
        e("s_lshr_b32 s5, s40, 1")
        e("s_lshl_b32 s5, s5, 2")
        e("s_and_b32 s42, s41, 3")
        e("s_add_u32 s5, s5, s42")
    e("s_and_b32 s6, s40, 1")
    e("s_lshl_b32 s6, s6, 3")
    e("s_lshr_b32 s42, s41, 2")
    e("s_add_u32 s6, s6, s42")
    e("s_and_b32 s4, s3, 3")
    e("s_lshl_b32 s7, s5, 2")
    e("s_add_u32 s7, s7, s4")
    e("v_and_b32 v2, 15, v1")
    e("v_lshrrev_b32 v3, 4, v1")
    e("v_lshrrev_b32 v6, 1, v2")
    e("v_xor_b32 v6, v6, v3")
    e("v_lshlrev_b32 v6, 4, v6")
    e("v_lshl_add_u32 v4, v2, 7, v6")
    e("v_xor_b32 v5, 64, v4")
    if opt.get("lonly"):
        e("s_cmp_lt_u32 s3, 8")
        e("s_cbranch_scc1 L1_END")
    e("s_cmp_ge_u32 s3, 4")
    e("s_cbranch_scc1 L1_B")

    ACC = 16
    CSA = 64
    FR = [72, 104]
    ONES = 136
    XA = 140
    WA = 142
    def acc(mu, p, u): return ACC + ((mu * 3 + p) * 2 + u) * 4
    def fx(s, mu): return FR[s] + mu * 4
    def fw(s, p, u): return FR[s] + 8 + (p * 2 + u) * 4
    e("s_cmp_eq_u32 s4, 3")
    e("s_cselect_b32 s8, 0, s4")
    e("s_lshl_b32 s40, s4, 12")
    e("v_add_u32 v%d, s40, v4" % XA)
    e("v_add_u32 v%d, s40, v5" % (XA + 1))
    e("v_lshrrev_b32 v6, 2, v2")
    e("v_lshl_add_u32 v6, v3, 3, v6")
    e("v_mul_u32_u24 v6, 192, v6")
    e("v_and_b32 v7, 1, v2")
    e("v_lshl_add_u32 v6, v7, 3, v6")
    e("v_lshrrev_b32 v7, 1, v2")
    e("v_and_b32 v7, 1, v7")
    e("v_and_b32 v8, 1, v3")
    e("v_lshlrev_b32 v8, 1, v8")
    e("v_xor_b32 v7, v7, v8")
    e("v_lshl_add_u32 v6, v7, 4, v6")
    e("v_xor_b32 v7, 32, v6")
    for p in range(3):
        e("s_add_u32 s40, s8, %d" % p)
        e("s_cmp_ge_u32 s40, 3")
        e("s_cselect_b32 s41, 3, 0")
        e("s_sub_u32 s40, s40, s41")
        e("s_mov_b32 s%d, s40" % (44 + p))
        e("s_lshl_b32 s40, s40, 6")
        e("s_add_u32 s40, s40, %d" % W1_LDS)
        e("v_add_u32 v%d, s40, v6" % (WA + 2 * p))
        e("v_add_u32 v%d, s40, v7" % (WA + 2 * p + 1))
    for i in range(48 + 8):
        e("v_mov_b32 v%d, 0" % (ACC + i))
    for i in range(4):
        e("v_mov_b32 v%d, 0x3f803f80" % (ONES + i))

    def a_reads(c, ks, s):
        slot = c % 4
        r = []
        for mu in range(2):
            r.append("ds_read_b128 %s, v%d offset:%d" % (vr(fx(s, mu)), XA + ks, slot * 16384 + mu * 2048))
        for p in range(3):
            for u in range(2):
                for h in range(2):
                    r.append("ds_read_b64_tr_b16 %s, v%d offset:%d" % (vr(fw(s, p, u) + 2 * h, 2), WA + 2 * p + u, slot * 12288 + ks * 6144 + h * 768))
        return r

    def a_mfma(s):
        m = []
        for p in range(3):
            for u in range(2):
                for mu in range(2):
                    m.append("v_mfma_f32_16x16x32_bf16 %s, %s, %s, %s" % (vr(acc(mu, p, u)), vr(fw(s, p, u)), vr(fx(s, mu)), vr(acc(mu, p, u))))
                if p == 0:
                    m.append("v_mfma_f32_16x16x32_bf16 %s, %s, %s, %s" % (vr(CSA + 4 * u), vr(fw(s, 0, u)), vr(ONES), vr(CSA + 4 * u)))
        return m

    PF = opt.get("pf", 1)
    if PF:
        for _ in range(opt.get("np", 1)):
            e("s_barrier")
    stamp(e, opt, 5)
    e("s_barrier")
    if opt.get("pfonly"):
        e("s_endpgm")
    stamp(e, opt, 6)
    for r in a_reads(0, 0, 0):
        e(r)
    e("s_waitcnt lgkmcnt(0)")
    for c in range(NCH):
        for l in interleave(a_mfma(0), a_reads(c, 1, 1), per=2):
            e(l)
        e("s_waitcnt lgkmcnt(0)")
        if c < NCH - 1:
            e("s_barrier")
            for l in interleave(a_mfma(1), a_reads(c + 1, 0, 0), per=2):
                e(l)
            e("s_waitcnt lgkmcnt(0)")
            if c == 3: stamp(e, opt, 7)
            if c == 6: stamp(e, opt, 8)
        else:
            for l in a_mfma(1):
                e(l)
    stamp(e, opt, 9)
    T = 148
    e("v_lshlrev_b32 v6, 4, v3")
    e("s_lshl_b32 s40, s8, 7")
    e("s_add_u32 s40, s40, %d" % CS_LDS)
    e("v_add_u32 v7, s40, v6")
    e("s_lshl_b32 s40, s4, 8")
    e("s_add_u32 s40, s40, %d" % ST_LDS)
    e("v_lshlrev_b32 v8, 2, v2")
    e("v_add_u32 v8, s40, v8")
    for p in range(3):
        e("s_lshl_b32 s40, s%d, 7" % (44 + p))
        e("s_add_u32 s40, s40, %d" % CS_LDS)
        e("v_add_u32 v%d, s40, v6" % (9 + p))
    e("v_lshlrev_b32 v12, 4, v1")
    e("s_mov_b32 exec_lo, 0x00010001")
    e("s_mov_b32 exec_hi, 0x00010001")
    e("s_nop 4")
    e("ds_write_b128 v7, %s" % vr(CSA))
    e("ds_write_b128 v7, %s offset:64" % vr(CSA + 4))
    e("s_mov_b64 exec, -1")
    srd(e, 24, 38, WS_END)
    e("s_waitcnt lgkmcnt(0)")
    e("s_barrier")
    stamp(e, opt, 10)
    for mu in range(2):
        e("ds_read_b32 v%d, v8 offset:%d" % (72 + 2 * mu, mu * 64))
        e("ds_read_b32 v%d, v8 offset:%d" % (76 + 2 * mu, 128 + mu * 64))
    CSR = 80
    for p in range(3):
        for u in range(2):
            e("ds_read_b128 %s, v%d offset:%d" % (vr(CSR + (p * 2 + u) * 4), 9 + p, u * 64))
    e("s_mov_b32 s40, 0x3acccccd")
    e("s_mov_b32 s41, 0x3727c5ac")
    e("s_mov_b32 s42, 0xbfb8aa3b")
    e("v_mov_b32 v104, 1.0")
    e("v_mov_b32 v105, 1.0")
    e("s_waitcnt lgkmcnt(6)")
    for mu in range(2):
        m, q = 72 + 2 * mu, 76 + 2 * mu
        e("v_mul_f32 v%d, s40, v%d" % (m, m))
        e("v_mul_f32 v%d, s40, v%d" % (q, q))
        e("v_fma_f32 v%d, -v%d, v%d, v%d" % (q, m, m, q))
        e("v_add_f32 v%d, s41, v%d" % (q, q))
        e("v_rsq_f32 v%d, v%d" % (q, q))
    e("s_nop 0")
    for mu in range(2):
        q = 76 + 2 * mu
        e("v_mul_f32 v%d, s42, v%d" % (106 + 2 * mu, q))
    e("s_waitcnt lgkmcnt(0)")
    e("s_mul_i32 s40, s7, 96")
    e("s_mul_i32 s41, s6, 3")
    e("s_add_u32 s40, s40, s41")
    TT = 112
    ZZ = 120
    OUT = 128
    n = 0
    for mu in range(2):
        m, r_, rn = 72 + 2 * mu, 76 + 2 * mu, 106 + 2 * mu
        for p in range(3):
            for u in range(2):
                for hh in range(2):
                    a = acc(mu, p, u) + 2 * hh
                    cs = CSR + (p * 2 + u) * 4 + 2 * hh
                    t = TT + u * 4 + hh * 2
                    e("v_pk_fma_f32 %s, %s, %s, %s op_sel_hi:[1,0,1] neg_lo:[0,1,0] neg_hi:[0,1,0]" % (vr(t, 2), vr(cs, 2), vr(m, 2), vr(a, 2)))
            for k in range(4):
                e("v_pk_mul_f32 %s, %s, %s op_sel_hi:[1,0]" % (vr(ZZ + 2 * k, 2), vr(TT + 2 * k, 2), vr(rn, 2)))
            for k in range(8):
                e("v_exp_f32 v%d, v%d" % (ZZ + k, ZZ + k))
            for k in range(4):
                e("v_pk_mul_f32 %s, %s, %s op_sel_hi:[1,0]" % (vr(TT + 2 * k, 2), vr(TT + 2 * k, 2), vr(r_, 2)))
            for k in range(4):
                e("v_pk_add_f32 %s, %s, v[104:105]" % (vr(ZZ + 2 * k, 2), vr(ZZ + 2 * k, 2)))
            for k in range(8):
                e("v_rcp_f32 v%d, v%d" % (ZZ + k, ZZ + k))
            e("s_add_u32 s41, s40, s%d" % (44 + p))
            e("s_add_u32 s41, s41, %d" % (mu * 48))
            e("s_lshl_b32 s41, s41, 10")
            for k in range(4):
                e("v_pk_mul_f32 %s, %s, %s" % (vr(TT + 2 * k, 2), vr(TT + 2 * k, 2), vr(ZZ + 2 * k, 2)))
            o = OUT + 4 * n
            for k in range(4):
                e("v_cvt_pk_bf16_f32 v%d, v%d, v%d" % (o + k, TT + 2 * k, TT + 2 * k + 1))
            e("buffer_store_dwordx4 %s, v12, s[24:27], s41 offen%s" % (vr(o), opt.get("hst", "")))
            n += 1
            if n == opt.get("be2", 4):
                e("s_barrier")
    stamp(e, opt, 11)
    prof_out(e, opt, 0, 12, 3, 24, vb=160)
    e("s_endpgm")

    e("L1_B:")
    e("s_cmp_ge_u32 s3, 8")
    e("s_cbranch_scc1 L1_L")
    ZA = 16
    GA = 40
    FB = [48, 68]
    TW = 88
    XB = 121
    HB = 123
    UW = 125
    UR_ = 112
    UG = 115
    def za(mu, T): return ZA + (mu * 3 + T) * 4
    def bx(s, mu): return FB[s] + mu * 4
    def bh(s, T): return FB[s] + 8 + T * 4
    NPF0 = opt.get("npf0", 3)
    pfq = list(range(10))
    def pf_one():
        pfq.pop(0)
        t = "s_mul_i32 s64, s62, s65\n"
        if opt.get("pfm"):
            t += "s_mov_b64 exec, s[66:67]\nbuffer_load_dword v153, v152, s[8:11], s64 offen\ns_mov_b64 exec, -1\n"
        else:
            t += "buffer_load_dword v153, v152, s[8:11], s64 offen\n"
        t += "s_add_u32 s62, s62, 1\ns_cmp_eq_u32 s62, 10\ns_cselect_b32 s62, 0, s62"
        return t
    if PF:
        if opt.get("rot3"):
            rot_calc(e, opt)
        else:
            e("s_mov_b32 s62, 0")
        e("s_lshr_b32 s40, s2, 3")
        e("s_and_b32 s41, s2, 1")
        e("s_mov_b32 s64, 0")
        e("s_mov_b32 s66, 0x55555555")
        e("s_mov_b32 s67, 0x55555555")
        e("s_cmp_eq_u32 s4, 0")
        e("s_cbranch_scc1 L1_BPX")
        e("s_cmp_eq_u32 s4, 1")
        e("s_cbranch_scc1 L1_BPW")
        e("s_mul_i32 s42, s41, 160")
        e("s_mul_i32 s43, s40, 5")
        e("s_add_u32 s42, s42, s43")
        e("s_mul_i32 s42, s42, 1280")
        e("v_lshrrev_b32 v152, 1, v1")
        e("v_min_u32 v152, 4, v152")
        e("v_mul_u32_u24 v152, 1280, v152")
        e("v_and_b32 v153, 1, v1")
        e("v_lshl_add_u32 v152, v153, 6, v152")
        e("v_add_u32 v152, s42, v152")
        e("s_mov_b32 s65, 128")
        e("s_mov_b32 s66, 0x155")
        e("s_mov_b32 s67, 0")
        e("s_waitcnt lgkmcnt(0)")
        e("s_cmp_eq_u32 s4, 2")
        e("s_cselect_b32 s8, s30, s32")
        e("s_cselect_b32 s9, s31, s33")
        e("s_mov_b32 s10, %d" % (640 * 1280))
        e("s_branch L1_BPJ")
        e("L1_BPW:")
        e("s_lshl_b32 s42, s40, 1")
        e("s_mul_i32 s42, s42, 3072")
        e("s_mul_i32 s43, s41, 1536")
        e("s_add_u32 s42, s42, s43")
        e("v_add_u32 v153, -48, v1")
        e("v_min_u32 v153, v153, v1")
        e("v_cmp_lt_u32 vcc, 23, v153")
        e("v_mov_b32 v154, %d" % (3072 - 24 * 64))
        e("s_mov_b32 s65, 196608")
        e("s_mov_b32 s67, 0x5555")
        e("v_cndmask_b32 v152, 0, v154, vcc")
        e("v_lshl_add_u32 v152, v153, 6, v152")
        e("v_add_u32 v152, s42, v152")
        e("s_waitcnt lgkmcnt(0)")
        e("s_mov_b32 s8, s34")
        e("s_mov_b32 s9, s35")
        e("s_mov_b32 s10, %d" % (640 * 3072))
        e("s_branch L1_BPJ")
        e("L1_BPX:")
        e("s_lshr_b32 s40, s2, 5")
        e("s_and_b32 s41, s40, 1")
        e("s_lshl_b32 s41, s41, 10")
        e("s_lshl_b32 s42, s5, 2")
        e("s_add_u32 s41, s41, s42")
        e("s_lshr_b32 s40, s40, 1")
        e("s_add_u32 s41, s41, s40")
        e("s_mul_i32 s41, s41, 1280")
        e("v_bfe_u32 v152, v1, 1, 4")
        e("v_mul_u32_u24 v152, 0x14000, v152")
        e("v_and_b32 v153, 1, v1")
        e("v_lshl_add_u32 v152, v153, 6, v152")
        e("v_add_u32 v152, s41, v152")
        e("s_mov_b32 s65, 128")
        e("s_mov_b32 s67, 0")
        e("s_waitcnt lgkmcnt(0)")
        e("s_mov_b32 s8, s28")
        e("s_mov_b32 s9, s29")
        e("s_mov_b32 s10, %d" % (2048 * 1280))
        e("L1_BPJ:")
        e("s_mov_b32 s11, 0x00020000")
        for _ in range(NPF0):
            e(pf_one())
        stamp(e, opt, 3)
        if not opt.get("sw"):
            e("s_waitcnt vmcnt(%d)" % opt.get("pfw", NPF0 - 1))
            stamp(e, opt, 4)
            e("s_barrier")
    e("s_lshl_b32 s50, s4, 12")
    e("v_add_u32 v%d, s50, v4" % XB)
    e("v_add_u32 v%d, s50, v5" % (XB + 1))
    e("v_add_u32 v%d, %d, v4" % (HB, H_LDS))
    e("v_add_u32 v%d, %d, v5" % (HB + 1, H_LDS))
    e("v_mul_u32_u24 v6, 1280, v3")
    e("v_lshl_add_u32 v6, v2, 4, v6")
    e("s_lshl_b32 s40, s4, 2")
    e("v_add_u32 v%d, s40, v6" % UW)
    e("s_lshl_b32 s40, s4, 6")
    e("s_mov_b32 s41, 81920")
    for rr in range(3):
        e("s_add_u32 s42, s40, %d" % (rr * 256))
        e("v_add_u32 v6, s42, v1")
        e("v_lshlrev_b32 v%d, 4, v6" % (UR_ + rr))
        e("v_mul_u32_u24 v7, 3277, v6")
        e("v_lshrrev_b32 v7, 16, v7")
        e("v_mul_u32_u24 v8, 20, v7")
        e("v_sub_u32 v8, v6, v8")
        e("v_mul_lo_u32 v7, v7, s41")
        e("v_lshl_add_u32 v%d, v8, 4, v7" % (UG + rr))
    e("v_lshlrev_b32 v6, 8, v3")
    e("v_add_u32 v6, s7, v6")
    e("v_cvt_f32_u32 v6, v6")
    e("v_mul_f32 v6, 0x3a000000, v6")
    e("v_cvt_f32_u32 v7, v2")
    e("v_add_f32 v8, 0x41800000, v7")
    for tau in range(2):
        for j in range(8):
            cj = ((j & 3) + 16 * (j >> 2)) / 32.0
            import struct
            lit = struct.unpack("<I", struct.pack("<f", cj))[0]
            e("v_add_f32 v9, 0x%x, v6" % lit)
            e("v_mul_f32 v9, v9, v%d" % (7 + tau))
            e("v_cos_f32 v%d, v9" % (128 + j))
            e("v_sin_f32 v%d, v9" % (136 + j))
        e("s_nop 0")
        for k in range(4):
            e("v_cvt_pk_bf16_f32 v%d, v%d, v%d" % (TW + tau * 4 + k, 128 + 2 * k, 128 + 2 * k + 1))
            e("v_cvt_pk_bf16_f32 v%d, v%d, v%d" % (TW + 8 + tau * 4 + k, 136 + 2 * k, 136 + 2 * k + 1))
        for k in range(4):
            e("v_xor_b32 v%d, 0x80008000, v%d" % (TW + 16 + tau * 4 + k, TW + tau * 4 + k))
    for i in range(32):
        e("v_mov_b32 v%d, 0" % (ZA + i))
    e("s_waitcnt lgkmcnt(0)")
    stamp(e, opt, 2)
    srd(e, 24, 38, WS_END)

    def b_reads(c, ks, s):
        slot = c % 4
        r = []
        for mu in range(2):
            r.append("ds_read_b128 %s, v%d offset:%d" % (vr(bx(s, mu)), XB + ks, slot * 16384 + mu * 2048))
        for T in range(3):
            r.append("ds_read_b128 %s, v%d offset:%d" % (vr(bh(s, T)), HB + ks, slot * 6144 + T * 2048))
        return r

    def b_mfma(s):
        m = []
        for T in range(3):
            for mu in range(2):
                m.append("v_mfma_f32_16x16x32_bf16 %s, %s, %s, %s" % (vr(za(mu, T)), vr(bx(s, mu)), vr(bh(s, T)), vr(za(mu, T))))
        for mu in range(2):
            m.append("v_mfma_f32_16x16x32_bf16 %s, %s, %s, %s" % (vr(GA + 4 * mu), vr(bx(s, mu)), vr(bx(s, mu)), vr(GA + 4 * mu)))
        return m

    if PF and opt.get("sw"):
        for p in range(opt.get("np", 1)):
            e("s_waitcnt vmcnt(%d)" % (NPF0 - 1))
            if p == 0: stamp(e, opt, 4)
            e("s_barrier")
            e(pf_one())
        e("s_waitcnt vmcnt(%d)" % (NPF0 - 1))
    stamp(e, opt, 5)
    e("s_barrier")
    stamp(e, opt, 6)
    if PF:
        for _ in range(opt.get("npf1", 2)):
            if pfq: e(pf_one())
    if opt.get("pfonly"):
        while pfq:
            e("s_barrier")
            e(pf_one())
        e("s_endpgm")
    for r in b_reads(0, 0, 0):
        e(r)
    e("s_waitcnt lgkmcnt(0)")
    for c in range(NCH):
        for l in interleave(b_mfma(0), b_reads(c, 1, 1), per=2):
            e(l)
        e("s_waitcnt lgkmcnt(0)")
        if c < NCH - 1:
            if PF and opt.get("sw"):
                need = min(9, c + opt.get("swn", 3))
                e("s_waitcnt vmcnt(%d)" % max(0, (10 - len(pfq)) - 1 - need))
            e("s_barrier")
            oth = b_reads(c + 1, 0, 0)
            if PF and pfq:
                oth = [pf_one()] + oth
            for l in interleave(b_mfma(1), oth, per=2):
                e(l)
            e("s_waitcnt lgkmcnt(0)")
            if c == 3: stamp(e, opt, 7)
            if c == 6: stamp(e, opt, 8)
        else:
            for l in b_mfma(1):
                e(l)
    stamp(e, opt, 9)
    if opt.get("bprio", 1):
        e("s_setprio %d" % opt.get("bprio", 1))
    e("s_lshl_b32 s40, s4, 8")
    e("s_add_u32 s40, s40, %d" % ST_LDS)
    e("v_lshlrev_b32 v6, 2, v2")
    e("v_add_u32 v6, s40, v6")
    e("v_lshlrev_b32 v7, 4, v3")
    e("v_add_u32 v7, s40, v7")
    e("s_mov_b32 s58, 0xaaaaaaaa")
    e("s_mov_b32 s59, 0xaaaaaaaa")
    e("s_mov_b32 s60, 0xcccccccc")
    e("s_mov_b32 s61, 0xcccccccc")
    e("s_nop 2")
    for mu in range(2):
        g = GA + 4 * mu
        e("v_cndmask_b32_e64 v8, v%d, v%d, s[58:59]" % (g, g + 1))
        e("v_cndmask_b32_e64 v9, v%d, v%d, s[58:59]" % (g + 2, g + 3))
        e("v_cndmask_b32_e64 v%d, v8, v9, s[60:61]" % (10 + mu))
    e("s_mov_b32 exec_lo, 0x00f0000f")
    e("s_mov_b32 exec_hi, 0xf0000f00")
    for mu in range(2):
        e("ds_write_b32 v6, v%d offset:%d" % (10 + mu, 128 + mu * 64))
    e("s_mov_b32 exec_lo, 0x00100010")
    e("s_mov_b32 exec_hi, 0x00100010")
    for mu in range(2):
        e("ds_write_b128 v7, %s offset:%d" % (vr(za(mu, 2)), mu * 64))
    e("s_mov_b64 exec, -1")
    e("s_waitcnt lgkmcnt(0)")
    e("s_barrier")
    stamp(e, opt, 10)
    SUM = 48
    SQ = 56
    for mu in range(2):
        e("ds_read_b128 %s, v7 offset:%d" % (vr(SUM + 4 * mu), mu * 64))
        e("ds_read_b128 %s, v7 offset:%d" % (vr(SQ + 4 * mu), 128 + mu * 64))
    e("s_mov_b32 s40, 0x3acccccd")
    e("s_mov_b32 s41, 0x3727c5ac")
    e("s_waitcnt lgkmcnt(0)")
    for k in range(8):
        e("v_mul_f32 v%d, s40, v%d" % (SUM + k, SUM + k))
        e("v_mul_f32 v%d, s40, v%d" % (SQ + k, SQ + k))
        e("v_fma_f32 v%d, -v%d, v%d, v%d" % (SQ + k, SUM + k, SUM + k, SQ + k))
        e("v_add_f32 v%d, s41, v%d" % (SQ + k, SQ + k))
        e("v_rsq_f32 v%d, v%d" % (SQ + k, SQ + k))
    e("s_nop 0")
    ZF = 64
    for T in range(3):
        for mu in range(2):
            for hh in range(2):
                a = za(mu, T) + 2 * hh
                e("v_pk_mul_f32 %s, %s, %s" % (vr(a, 2), vr(a, 2), vr(SQ + 4 * mu + 2 * hh, 2)))
        for mu in range(2):
            for hh in range(2):
                a = za(mu, T) + 2 * hh
                e("v_cvt_pk_bf16_f32 v%d, v%d, v%d" % (ZF + 4 * T + 2 * mu + hh, a, a + 1))
    e("s_nop 1")
    def ur(t): return 16 + 4 * t
    def vv(t): return 24 + 4 * t
    def pp(t): return 32 + 4 * t
    def qq(t): return 40 + 4 * t
    def C(t): return TW + 4 * t
    def S(t): return TW + 8 + 4 * t
    def NC(t): return TW + 16 + 4 * t
    M = "v_mfma_f32_16x16x32_bf16 %s, %s, %s, %s"
    for t in range(2):
        e(M % (vr(ur(t)), vr(C(t)), vr(ZF), "0"))
        e(M % (vr(vv(t)), vr(S(t)), vr(ZF), "0"))
        e(M % (vr(pp(t)), vr(C(t)), vr(ZF + 8), "0"))
        e(M % (vr(qq(t)), vr(S(t)), vr(ZF + 8), "0"))
    for t in range(2):
        e(M % (vr(ur(t)), vr(S(t)), vr(ZF + 4), vr(ur(t))))
        e(M % (vr(vv(t)), vr(NC(t)), vr(ZF + 4), vr(vv(t))))
    e("s_mul_i32 s40, s5, 320")
    e("s_mul_i32 s41, s6, 20")
    e("s_add_u32 s40, s40, s41")
    e("s_lshl_b32 s40, s40, 4")
    e("s_add_u32 s40, s40, 0x%x" % WS_U)
    e("s_nop 4")
    OU = 128
    for t in range(2):
        for i in range(4):
            e("v_add_f32_dpp v%d, v%d, v%d row_shl:8 row_mask:0xf bank_mask:0xf bound_ctrl:0" % (48 + 8 * t + i, qq(t) + i, pp(t) + i))
            e("v_subrev_f32_dpp v%d, v%d, v%d row_shl:8 row_mask:0xf bank_mask:0xf bound_ctrl:0" % (52 + 8 * t + i, pp(t) + i, qq(t) + i))
    for t in range(2):
        for i in range(4):
            e("v_cvt_pk_bf16_f32 v%d, v%d, v%d" % (OU + 4 * t + i, ur(t) + i, vv(t) + i))
    for t in range(2):
        for i in range(4):
            e("ds_write_b32 v%d, v%d offset:%d" % (UW, OU + 4 * t + i, (16 * t + i) * 320))
    for t in range(2):
        for i in range(4):
            e("v_cvt_pk_bf16_f32 v%d, v%d, v%d" % (OU + 8 + 4 * t + i, 48 + 8 * t + i, 52 + 8 * t + i))
    e("s_mov_b32 exec_lo, 0x000f000f")
    e("s_mov_b32 exec_hi, 0x000f000f")
    for t in range(2):
        for i in range(4):
            e("ds_write_b32 v%d, v%d offset:%d" % (UW, OU + 8 + 4 * t + i, (16 * t + i) * 320 + 256))
    e("s_mov_b64 exec, -1")
    e("s_waitcnt lgkmcnt(0)")
    e("s_barrier")
    stamp(e, opt, 11)
    e("s_cmp_ge_u32 s4, 2")
    e("ds_read_b128 v[16:19], v%d" % UR_)
    e("ds_read_b128 v[20:23], v%d" % (UR_ + 1))
    e("s_cbranch_scc1 L1_B2")
    e("ds_read_b128 v[24:27], v%d" % (UR_ + 2))
    e("s_waitcnt lgkmcnt(0)")
    e("buffer_store_dwordx4 v[24:27], v%d, s[24:27], s40 offen%s" % (UG + 2, opt.get("ust", "")))
    e("L1_B2:")
    e("s_waitcnt lgkmcnt(0)")
    e("buffer_store_dwordx4 v[16:19], v%d, s[24:27], s40 offen%s" % (UG, opt.get("ust", "")))
    e("buffer_store_dwordx4 v[20:23], v%d, s[24:27], s40 offen%s" % (UG + 1, opt.get("ust", "")))
    stamp(e, opt, 12)
    prof_out(e, opt, 0, 12, 3, 24, vb=160)
    e("s_endpgm")

    e("L1_L:")
    if opt.get("lprio"):
        e("s_setprio %d" % opt["lprio"])
    VX = 112
    VW = 116
    VH = 119
    VH2 = 120
    VW2 = 125
    if opt.get("ls7"):
        e(opt["ls7"])
    e("v_lshrrev_b32 v6, 3, v1")
    e("v_and_b32 v7, 7, v1")
    e("v_xor_b32 v8, v7, v3")
    e("v_lshlrev_b32 v8, 4, v8")
    XS = opt.get("xs", 81920)
    e("s_mov_b32 s40, %d" % XS)
    e("v_mul_lo_u32 v9, v6, s40")
    e("v_add_u32 v9, v9, v8")
    e("s_mul_i32 s41, s7, %d" % opt.get("xr", 1280))
    for q in range(4):
        e("s_add_u32 s42, s41, %d" % (q * 8 * XS - q * 1024))
        if q % 2 == 0:
            e("v_add_u32 v%d, s42, v9" % (VX + q))
        else:
            e("v_xor_b32 v10, 64, v9")
            e("v_add_u32 v%d, s42, v10" % (VX + q))
    e("s_mul_i32 s41, s4, %d" % (16 * 3072))
    e("s_mul_i32 s42, s6, 192")
    e("s_add_u32 s41, s41, s42")
    for i in range(3):
        e("v_add_u32 v10, %d, v1" % (64 * i))
        e("v_mul_u32_u24 v11, 171, v10")
        e("v_lshrrev_b32 v11, 11, v11")
        e("v_mul_u32_u24 v12, 12, v11")
        e("v_sub_u32 v12, v10, v12")
        e("v_lshrrev_b32 v13, 3, v11")
        e("v_lshlrev_b32 v13, 1, v13")
        e("v_xor_b32 v12, v12, v13")
        e("v_mul_u32_u24 v11, 3072, v11")
        e("v_lshl_add_u32 v11, v12, 4, v11")
        e("s_sub_u32 s42, s41, %d" % (i * 1024))
        e("v_add_u32 v%d, s42, v11" % (VW + i))
    e("s_and_b32 s41, s4, 1")
    e("s_mul_i32 s42, s6, 20")
    e("s_lshl_b32 s43, s41, 3")
    e("s_add_u32 s43, s43, s42")
    e("v_add_u32 v10, s43, v6")
    e("v_mov_b32 v11, 320")
    e("v_cmp_eq_u32 vcc, 0, v10")
    e("s_lshl_b32 s43, s41, 6")
    e("v_xor_b32 v12, s43, v8")
    e("v_cndmask_b32 v10, v10, v11, vcc")
    e("v_mul_u32_u24 v10, 1280, v10")
    e("v_add_u32 v%d, v10, v12" % VH)
    e("s_add_u32 s43, s42, 16")
    e("v_add_u32 v10, s43, v6")
    e("v_and_b32 v10, 0x1ff, v10")
    e("s_cmp_eq_u32 s4, 1")
    e("s_cselect_b32 s43, 0, 1280")
    e("v_mul_lo_u32 v10, v10, s43")
    e("s_lshl_b32 s43, s4, 1")
    e("v_add_u32 v11, s43, v3")
    e("v_and_b32 v11, 7, v11")
    e("v_xor_b32 v11, v11, v7")
    e("v_lshl_add_u32 v%d, v11, 4, v10" % VH2)
    e("s_lshl_b32 s50, s4, 12")
    e("s_mul_i32 s51, s4, 3072")
    e("s_add_u32 s51, s51, %d" % W1_LDS)
    e("s_lshl_b32 s52, s4, 10")
    e("s_add_u32 s52, s52, %d" % H_LDS)
    e("s_lshl_b32 s53, s4, 9")
    e("s_add_u32 s53, s53, %d" % (H_LDS + 4096))
    stamp(e, opt, 13)
    e("s_waitcnt lgkmcnt(0)")
    stamp(e, opt, 2)
    srd(e, 8, 28, 2048 * 1280)
    srd(e, 12, 34, 640 * 3072)
    e("s_cmp_ge_u32 s4, 2")
    e("s_cselect_b32 s16, s32, s30")
    e("s_cselect_b32 s17, s33, s31")
    e("s_mov_b32 s18, %d" % (640 * 1280))
    e("s_mov_b32 s19, 0x00020000")
    srd(e, 20, 36, 1536 * 1280)
    srd(e, 24, 38, WS_END2 if opt.get("w2l") else WS_END)

    if opt.get("rot3"):
        rot_calc(e, opt)
    elif opt.get("rot"):
        e(opt["rot"])
    else:
        e("s_mov_b32 s62, 0")
    def dma(c):
        slot = c % 4
        r = []
        pre = "s_add_u32 s63, s62, %d\ns_cmp_ge_u32 s63, 10\ns_cselect_b32 s54, 10, 0\ns_sub_u32 s63, s63, s54\ns_lshl_b32 s54, s63, 7\ns_mul_i32 s55, s63, 196608\n" % c
        r.append(pre + "s_add_u32 m0, s50, %d\ns_nop 0\nbuffer_load_dwordx4 v%d, s[8:11], s54 offen lds" % (slot * 16384, VX))
        for q in range(1, 4):
            r.append("buffer_load_dwordx4 v%d, s[8:11], s54 offen offset:%d lds" % (VX + q, q * 1024))
        r.append("s_add_u32 m0, s51, %d\ns_nop 0\nbuffer_load_dwordx4 v%d, s[12:15], s55 offen lds" % (slot * 12288, VW))
        for i in range(1, 3):
            r.append("buffer_load_dwordx4 v%d, s[12:15], s55 offen offset:%d lds" % (VW + i, i * 1024))
        r.append("s_add_u32 m0, s52, %d\ns_nop 0\nbuffer_load_dwordx4 v%d, s[16:19], s54 offen lds" % (slot * 6144, VH))
        r.append("s_add_u32 m0, s53, %d\ns_mov_b32 exec_hi, 0\nbuffer_load_dwordx4 v%d, s[16:19], s54 offen lds\ns_mov_b32 exec_hi, -1" % (slot * 6144, VH2))
        return r

    issued = []
    queue = []
    if opt.get("nch"):
        NCH = opt["nch"]
    skip = opt.get("skip", [])
    for c in range(NCH):
        for li, l in enumerate(dma(c)):
            if li in skip:
                l = "\n".join(x for x in l.split("\n") if not x.startswith("buffer_load"))
                if l: e_skip = l
                queue.append((c, -1 if c < 4 else c - 3, l + "\ns_nop 0", True))
                continue
            queue.append((c, -1 if c < 4 else c - 3, l, False))
    def take(pos, budget):
        out = []
        n = 0
        while queue and queue[0][1] <= pos and n < budget:
            c, _, t, sk = queue.pop(0)
            out.append(t)
            if not sk:
                issued.append(c)
                n += 1
        return out
    def allowed_after(c):
        last = max(i for i, t in enumerate(issued) if t <= c)
        return len(issued) - 1 - last
    SPF = opt.get("spf", 0)
    spfq = list(range(10))
    def spf_one():
        spfq.pop(0)
        r = []
        for jj in range(4):
            r.append("s_buffer_load_dword s31, s[8:11], s28 offset:%d" % (jj * 81920))
        for t in range(6):
            r.append("s_buffer_load_dword s31, s[12:15], s29 offset:%d" % (t * 128))
            if opt.get("s64"):
                r.append("s_buffer_load_dword s31, s[12:15], s29 offset:%d" % (t * 128 + 64))
        for t in range(3):
            r.append("s_buffer_load_dword s31, s[16:19], s30 offset:%d" % (t * 1280))
        if opt.get("s64"):
            for jj in range(4):
                r.append("s_buffer_load_dword s31, s[8:11], s28 offset:%d" % (jj * 81920 + 64))
            for t in range(3):
                r.append("s_buffer_load_dword s31, s[16:19], s30 offset:%d" % (t * 1280 + 64))
        r.append("s_add_u32 s28, s28, 128\ns_add_u32 s29, s29, 196608\ns_add_u32 s30, s30, 128")
        return r
    if SPF:
        e("s_lshr_b32 s40, s2, 5")
        e("s_and_b32 s41, s40, 1")
        e("s_lshl_b32 s41, s41, 4")
        e("s_lshl_b32 s42, s4, 2")
        e("s_add_u32 s41, s41, s42")
        e("s_lshl_b32 s41, s41, 6")
        e("s_lshl_b32 s42, s5, 2")
        e("s_add_u32 s41, s41, s42")
        e("s_lshr_b32 s40, s40, 1")
        e("s_add_u32 s41, s41, s40")
        e("s_mul_i32 s28, s41, 1280")
        e("s_lshr_b32 s40, s2, 3")
        e("s_lshl_b32 s41, s40, 1")
        e("s_lshr_b32 s42, s4, 1")
        e("s_add_u32 s41, s41, s42")
        e("s_mul_i32 s41, s41, 3072")
        e("s_and_b32 s42, s2, 1")
        e("s_mul_i32 s43, s42, 1536")
        e("s_add_u32 s41, s41, s43")
        e("s_and_b32 s43, s4, 1")
        e("s_mul_i32 s29, s43, 768")
        e("s_add_u32 s29, s29, s41")
        e("s_mul_i32 s42, s42, 160")
        e("s_mul_i32 s40, s40, 5")
        e("s_add_u32 s42, s42, s40")
        e("s_mul_i32 s43, s43, 3")
        e("s_add_u32 s42, s42, s43")
        e("s_mul_i32 s30, s42, 1280")
        for _ in range(SPF):
            for l in spf_one():
                e(l)
        e("s_waitcnt lgkmcnt(0)")
        stamp(e, opt, 13)
        if opt.get("spb"):
            e("s_barrier")
    if PF:
        e("s_barrier")
    for l in take(-1, 9):
        e(l)
    stamp(e, opt, 3)
    if PF:
        for _ in range(opt.get("np", 1) - 1):
            e("s_barrier")
            for l in take(-1, 9):
                e(l)
    for l in take(-1, opt.get("lpre", 18) - 9 * (opt.get("np", 1) if PF else 1)):
        e(l)
    stamp(e, opt, 4)
    W2L = opt.get("w2l", 0)
    if W2L:
        e("s_lshr_b32 s43, s2, 3")
        e("s_cmp_ge_u32 s43, 30")
        e("s_cselect_b32 s47, 30, 0")
        e("s_sub_u32 s43, s43, s47")
        e("s_lshl_b32 s48, s43, 4")
        e("s_lshl_b32 s47, s4, 2")
        e("s_add_u32 s48, s48, s47")
        e("s_and_b32 s49, s2, 1")
        e("s_mul_i32 s49, s49, 640")
        e("s_and_b32 s47, s2, 7")
        e("s_mul_i32 s47, s47, 0x%x" % W2L_SZ)
        e("s_add_u32 s47, s47, 0x%x" % WS_W2L)
        e("v_lshrrev_b32 v10, 2, v1")
        e("v_mul_u32_u24 v10, 1280, v10")
        e("v_and_b32 v11, 3, v1")
        e("v_lshl_add_u32 v%d, v11, 4, v10" % VW2)
        e("s_lshl_b32 s56, s4, 11")
        e("s_add_u32 s59, s56, %d" % (W1_LDS + 2 * 12288))
        e("s_add_u32 s56, s56, %d" % W2S_LDS)
        e("s_lshl_b32 s57, s4, 12")
        e("s_add_u32 s57, s57, %d" % (X_LDS + 2 * 16384))
        e("s_add_u32 s58, s57, 2048")
        e("v_lshrrev_b32 v8, 2, v2")
        e("v_lshl_add_u32 v8, v3, 2, v8")
        e("v_lshlrev_b32 v8, 6, v8")
        e("v_and_b32 v9, 3, v2")
        e("v_lshl_add_u32 v8, v9, 3, v8")
        for r in range(4):
            e("v_add_u32 v%d, s%d, v8" % (12 + r, 56 + r))
        e("v_lshlrev_b32 v9, 4, v1")
    else:
        if opt.get("w2q"):
            e("s_lshr_b32 s43, s2, 3")
            e("s_cmp_ge_u32 s43, 30")
            e("s_cselect_b32 s47, 30, 0")
            e("s_sub_u32 s43, s43, s47")
            e("s_lshl_b32 s43, s43, 2")
            e("s_add_u32 s43, s43, s4")
            e("s_mul_i32 s47, s43, 6554")
            e("s_lshr_b32 s47, s47, 16")
            e("s_mul_i32 s48, s47, 10")
            e("s_sub_u32 s43, s43, s48")
            e("s_lshr_b32 s48, s2, 1")
            e("s_and_b32 s48, s48, 3")
            e("s_mul_i32 s48, s48, 12")
            e("s_add_u32 s48, s48, s47")
            e("s_add_u32 s47, s43, 10")
            e("s_cmp_lt_u32 s43, 5")
            e("s_cselect_b32 s47, s43, s47")
            e("s_add_u32 s43, s43, 5")
            e("s_bitcmp1_b32 s2, 0")
            e("s_cselect_b32 s47, s43, s47")
        else:
            e("s_cmp_ge_u32 s2, 240")
            e("s_cselect_b32 s43, 240, 0")
            e("s_sub_u32 s43, s2, s43")
            e("s_mul_i32 s47, s43, 1366")
            e("s_lshr_b32 s47, s47, 16")
            e("s_mul_i32 s48, s47, 48")
            e("s_sub_u32 s48, s43, s48")
        e("v_lshrrev_b32 v10, 2, v1")
        e("v_mul_u32_u24 v10, 1280, v10")
        e("v_and_b32 v11, 3, v1")
        e("v_lshl_add_u32 v10, v11, 4, v10")
        e("s_mul_i32 s43, s48, %d" % (32 * 1280))
        if opt.get("w2q"):
            e("s_lshl_b32 s49, s47, 6")
            e("s_add_u32 s43, s43, s49")
        else:
            e("s_lshl_b32 s49, s47, 8")
            e("s_add_u32 s43, s43, s49")
            e("s_lshl_b32 s49, s4, 6")
            e("s_add_u32 s43, s43, s49")
        e("v_add_u32 v%d, s43, v10" % VW2)
        e("s_lshl_b32 s56, s4, 11")
        e("s_add_u32 s56, s56, %d" % W2S_LDS)
        e("s_mov_b32 s57, %d" % (16 * 1280 - 1024))
        e("v_lshrrev_b32 v8, 2, v2")
        e("v_lshl_add_u32 v8, v3, 2, v8")
        e("v_lshlrev_b32 v8, 6, v8")
        e("v_and_b32 v9, 3, v2")
        e("v_lshl_add_u32 v8, v9, 3, v8")
        e("v_add_u32 v8, s56, v8")
        e("v_lshlrev_b32 v9, 4, v1")
        if opt.get("w2q"):
            e("s_lshl_b32 s40, s47, 1")
        else:
            e("s_lshl_b32 s40, s47, 3")
            e("s_lshl_b32 s41, s4, 1")
            e("s_add_u32 s40, s40, s41")
        e("s_mul_i32 s40, s40, 48")
        e("s_add_u32 s40, s40, s48")
        e("s_lshl_b32 s40, s40, 10")
        e("s_add_u32 s40, s40, 0x%x" % WS_W2T)
        e("s_add_u32 s41, s40, %d" % (48 * 1024))
    stamp(e, opt, 5)
    e("s_waitcnt vmcnt(%d)" % allowed_after(0))
    e("s_barrier")
    stamp(e, opt, 6)
    W2F = 128
    w2pos = opt.get("w2pos", NCH - 3)
    for c in range(NCH - 1):
        for l in take(c, opt.get("lb0", 9) if c == 0 else opt.get("lb", 12)):
            e(l)
        if SPF and spfq:
            for l in spf_one():
                e(l)
        if c == w2pos and W2L:
            assert not queue and c + 3 == NCH
            for r in range(4):
                e("s_add_u32 s40, s48, %d" % r)
                e("s_mul_i32 s41, s40, 6554")
                e("s_lshr_b32 s41, s41, 16")
                e("s_mul_i32 s42, s41, 10")
                e("s_sub_u32 s42, s40, s42")
                e("s_mul_i32 s43, s41, 40960")
                e("s_lshl_b32 s44, s42, 6")
                e("s_add_u32 s43, s43, s44")
                e("s_add_u32 s43, s43, s49")
                e("s_add_u32 s44, s43, %d" % (16 * 1280 - 1024))
                e("s_mov_b32 m0, s%d" % (56 + r))
                e("s_mul_i32 s42, s42, 96")
                e("buffer_load_dwordx4 v%d, s[20:23], s43 offen lds" % VW2)
                e("buffer_load_dwordx4 v%d, s[20:23], s44 offen offset:1024 lds" % VW2)
                e("s_add_u32 s42, s42, s41")
                e("s_lshl_b32 s42, s42, 10")
                e("s_add_u32 s%d, s42, s47" % (64 + r))
            issued.extend([99] * 8)
        elif c == w2pos:
            assert not queue
            e("s_mov_b32 m0, s56")
            e("s_nop 0")
            e("buffer_load_dwordx4 v%d, s[20:23], 0 offen lds" % VW2)
            e("buffer_load_dwordx4 v%d, s[20:23], s57 offen offset:1024 lds" % VW2)
            issued.extend([99, 99])
        e("s_waitcnt vmcnt(%d)" % allowed_after(c + 1))
        e("s_barrier")
        if c == 0: stamp(e, opt, 10)
        if c == 1: stamp(e, opt, 12)
        if c == (3 if NCH == 10 else 9): stamp(e, opt, 7)
        if c == (6 if NCH == 10 else 14): stamp(e, opt, 8)
    assert not queue
    stamp(e, opt, 9)
    if W2L:
        e("s_barrier")
        e("s_waitcnt vmcnt(0)")
        for r in range(4):
            for t in range(2):
                for hh in range(2):
                    e("ds_read_b64_tr_b16 %s, v%d offset:%d" % (vr(W2F + 8 * r + 4 * t + 2 * hh, 2), 12 + r, hh * 1024 + t * 32))
            e("s_add_u32 s40, s%d, %d" % (64 + r, 48 * 1024))
            e("s_waitcnt lgkmcnt(0)")
            e("buffer_store_dwordx4 %s, v9, s[24:27], s%d offen%s" % (vr(W2F + 8 * r), 64 + r, opt.get("wst", "")))
            e("buffer_store_dwordx4 %s, v9, s[24:27], s40 offen%s" % (vr(W2F + 8 * r + 4), opt.get("wst", "")))
    else:
        e("s_waitcnt vmcnt(0)")
        for t in range(2):
            for hh in range(2):
                e("ds_read_b64_tr_b16 %s, v8 offset:%d" % (vr(W2F + 4 * t + 2 * hh, 2), hh * 1024 + t * 32))
        e("s_waitcnt lgkmcnt(0)")
        e("buffer_store_dwordx4 %s, v9, s[24:27], s40 offen%s" % (vr(W2F), opt.get("wst", "")))
        e("buffer_store_dwordx4 %s, v9, s[24:27], s41 offen%s" % (vr(W2F + 4), opt.get("wst", "")))
    stamp(e, opt, 11)
    prof_out(e, opt, 0, 12, 3, 24, vb=160)
    e("L1_END:")
    e("s_endpgm")
    return e.text()


HEAD = """; Kernarg layout for this problem (88 bytes, ptrs only, base s[0:1]):
"""


def kernel_wrap(name, body, vgpr=256, sgpr=102, accum=None):
    accum = accum or vgpr
    txt = ".globl %s\n.p2align 8\n.type %s,@function\n%s:\n%s" % (name, name, name, body)
    desc = """.p2align 6
.amdhsa_kernel %s
  .amdhsa_next_free_vgpr %d
  .amdhsa_next_free_sgpr %d
  .amdhsa_accum_offset %d
  .amdhsa_group_segment_fixed_size 0
  .amdhsa_kernarg_size 88
  .amdhsa_user_sgpr_count 2
  .amdhsa_user_sgpr_kernarg_segment_ptr 1
  .amdhsa_system_sgpr_workgroup_id_x 1
.end_amdhsa_kernel
""" % (name, vgpr, sgpr, accum)
    return txt, desc


DEF = {"hst": "", "rbm": 2, "sym": 1, "wst": " sc1", "ust": " sc1", "pre2": 1, "hb2": 5, "yb2": 9, "ys": 1, "w2q": 1, "krot2": "s_and_b32 s25, s2, 1\ns_mul_i32 s25, s25, 24576", "xc2": 9, "pf": 0, "lprio": 3, "lpre": 18, "lb0": 9, "lb": 12, "rot3": [0, 0, 3, 5]}


def build(opt=None, only_l1=False):
    global PROF_ON
    o = dict(DEF)
    o.update(opt or {})
    opt = o
    PROF_ON = bool(opt.get("prof"))
    k1 = KN + "_kernel"
    k2 = "fnet_l2_kernel"
    launches = ["; @launch kernel=%s grid=(256,1,1) block=(768,1,1) lds=%d" % (k1, L1_LDS)]
    t1, d1 = kernel_wrap(k1, gen_l1(opt), vgpr=168)
    txt = [t1]
    desc = [d1]
    if not only_l1:
        from gen2 import gen_l2, L2_LDS, L2_BLOCK, L2_VGPR, L2_ACC
        launches.append("; @launch kernel=%s grid=(256,1,1) block=(%d,1,1) lds=%d" % (k2, L2_BLOCK, L2_LDS))
        if opt.get("dup2"):
            launches.append(launches[-1])
        t2, d2 = kernel_wrap(k2, gen_l2(opt), vgpr=L2_VGPR, accum=L2_ACC)
        txt.append(t2)
        desc.append(d2)
    s = HEAD + "\n".join(launches) + "\n.amdgcn_target \"amdgcn-amd-amdhsa--gfx950\"\n.text\n" + "\n".join(txt)
    s += ".section .rodata,\"a\"\n" + "".join(desc)
    return s


if __name__ == "__main__":
    only = len(sys.argv) > 1 and sys.argv[1] == "l1"
    s = build({}, only_l1=only)
    out = "cdna_kernels/%s.s" % KN if not only else "l1.s"
    open(out, "w").write(s)
    print("wrote", out, len(s))
```

```python
import sys
KN = "recurrent_scan__spectral_fnet__dense_activation_silu__prompt"

WS_H = 0
WS_U = 0x600000
WS_W2T = 0x880000
WS_END = 0xA60000
WS_W2L = 0x1000000
W2L_SZ = 0xF0000
WS_END2 = WS_W2L + 8 * W2L_SZ


PROF_ON = False


class E:
    def __init__(self):
        self.L = []

    def __call__(self, s):
        for x in s.split("\n"):
            x = x.strip()
            if x:
                self.L.append(x)

    def text(self):
        return "\n".join(("" if l.endswith(":") else "  ") + l for l in self.L) + "\n"


def vr(b, n=4):
    return "v[%d:%d]" % (b, b + n - 1)


def srd(e, d, lo, nbytes):
    if nbytes == WS_END and PROF_ON:
        nbytes = 0x1000000
    e("s_mov_b32 s%d, s%d" % (d, lo))
    e("s_mov_b32 s%d, s%d" % (d + 1, lo + 1))
    e("s_mov_b32 s%d, 0x%x" % (d + 2, nbytes))
    e("s_mov_b32 s%d, 0x00020000" % (d + 3))


PROF_BASE = 0xB00000


def stamp(e, opt, i, real=False):
    if opt.get("prof"):
        e("%s s[%d:%d]" % ("s_memrealtime" if real else "s_memtime", 70 + 2 * i, 71 + 2 * i))


def prof_out(e, opt, kern, nwaves, wave_sreg, srd0, n=16, vb=240):
    if not opt.get("prof"):
        return
    e("s_mov_b64 exec, -1")
    e("s_waitcnt vmcnt(0)")
    stamp(e, opt, n - 2)
    stamp(e, opt, n - 1, real=True)
    e("s_waitcnt lgkmcnt(0)")
    e("s_mul_i32 s68, s2, %d" % nwaves)
    e("s_add_u32 s68, s68, s%d" % wave_sreg)
    e("s_lshl_b32 s68, s68, 6")
    e("s_add_u32 s68, s68, 0x%x" % (PROF_BASE + kern * 0x40000))
    e("v_mov_b32 v%d, 0" % (vb + 4))
    for i in range(n):
        e("v_mov_b32 v%d, s%d" % (vb + (i % 4), 70 + 2 * i))
        if i % 4 == 3:
            e("s_mov_b64 exec, 1")
            e("buffer_store_dwordx4 v[%d:%d], v%d, s[%d:%d], s68 offen offset:%d" % (vb, vb + 3, vb + 4, srd0, srd0 + 3, (i // 4) * 16))
            e("s_waitcnt vmcnt(0)")
            e("s_mov_b64 exec, -1")


def interleave(mf, other, per=2, start=0):
    out = []
    o = list(other)
    for i, m in enumerate(mf):
        out.append(m)
        if i >= start:
            for _ in range(per):
                if o:
                    out.append(o.pop(0))
    out += o
    return out


X_LDS = 0
W1_LDS = 65536
H_LDS = 114688
W2S_LDS = 139264
ST_LDS = 147456
CS_LDS = 148480
L1_LDS = 148864


def rot_calc(e, opt):
    a, b, q, p = opt["rot3"]
    e("s_lshr_b32 s40, s2, 5")
    e("s_mul_i32 s40, s40, %d" % a)
    e("s_lshr_b32 s41, s2, 3")
    e("s_and_b32 s41, s41, 3")
    e("s_mul_i32 s41, s41, %d" % b)
    e("s_add_u32 s40, s40, s41")
    e("s_lshr_b32 s41, s2, 1")
    e("s_and_b32 s41, s41, 3")
    e("s_mul_i32 s41, s41, %d" % q)
    e("s_add_u32 s40, s40, s41")
    e("s_and_b32 s41, s2, 1")
    e("s_mul_i32 s41, s41, %d" % p)
    e("s_add_u32 s40, s40, s41")
    e("s_mul_i32 s41, s40, 205")
    e("s_lshr_b32 s41, s41, 11")
    e("s_mul_i32 s41, s41, 10")
    e("s_sub_u32 s62, s40, s41")


def gen_l1(opt):
    e = E()
    NCH = 10
    e("s_cmp_ge_u32 s2, 256")
    e("s_cbranch_scc1 L1_END")
    stamp(e, opt, 0, real=True)
    stamp(e, opt, 1)
    e("s_load_dwordx2 s[28:29], s[0:1], 0")
    e("s_load_dwordx2 s[30:31], s[0:1], 24")
    e("s_load_dwordx2 s[32:33], s[0:1], 32")
    e("s_load_dwordx2 s[34:35], s[0:1], 48")
    e("s_load_dwordx2 s[36:37], s[0:1], 56")
    e("s_load_dwordx2 s[38:39], s[0:1], 80")
    e("v_lshrrev_b32 v2, 6, v0")
    e("v_and_b32 v1, 63, v0")
    e("v_readfirstlane_b32 s3, v2")
    e("s_and_b32 s40, s2, 7")
    e("s_lshr_b32 s41, s2, 3")
    if opt.get("rbm") == 2:
        e("s_lshr_b32 s5, s40, 1")
        e("s_sub_u32 s42, 7, s5")
        e("s_bitcmp1_b32 s41, 0")
        e("s_cselect_b32 s5, s42, s5")
        e("s_and_b32 s42, s41, 2")
        e("s_lshl_b32 s42, s42, 2")
        e("s_add_u32 s5, s5, s42")
    elif opt.get("rbm"):
        e("s_and_b32 s5, s40, 6")
        e("s_and_b32 s42, s41, 1")
        e("s_add_u32 s5, s5, s42")
        e("s_and_b32 s42, s41, 2")
        e("s_lshl_b32 s42, s42, 2")
        e("s_add_u32 s5, s5, s42")
    else:
        e("s_lshr_b32 s5, s40, 1")
        e("s_lshl_b32 s5, s5, 2")
        e("s_and_b32 s42, s41, 3")
        e("s_add_u32 s5, s5, s42")
    e("s_and_b32 s6, s40, 1")
    e("s_lshl_b32 s6, s6, 3")
    e("s_lshr_b32 s42, s41, 2")
    e("s_add_u32 s6, s6, s42")
    e("s_and_b32 s4, s3, 3")
    e("s_lshl_b32 s7, s5, 2")
    e("s_add_u32 s7, s7, s4")
    e("v_and_b32 v2, 15, v1")
    e("v_lshrrev_b32 v3, 4, v1")
    e("v_lshrrev_b32 v6, 1, v2")
    e("v_xor_b32 v6, v6, v3")
    e("v_lshlrev_b32 v6, 4, v6")
    e("v_lshl_add_u32 v4, v2, 7, v6")
    e("v_xor_b32 v5, 64, v4")
    if opt.get("lonly"):
        e("s_cmp_lt_u32 s3, 8")
        e("s_cbranch_scc1 L1_END")
    e("@@SPLIT")
    e("s_cmp_ge_u32 s3, 4")
    e("s_cbranch_scc1 L1_B")

    ACC = 16
    CSA = 64
    FR = [72, 104]
    ONES = 136
    XA = 140
    WA = 142
    def acc(mu, p, u): return ACC + ((mu * 3 + p) * 2 + u) * 4
    def fx(s, mu): return FR[s] + mu * 4
    def fw(s, p, u): return FR[s] + 8 + (p * 2 + u) * 4
    e("s_cmp_eq_u32 s4, 3")
    e("s_cselect_b32 s8, 0, s4")
    e("s_lshl_b32 s40, s4, 12")
    e("v_add_u32 v%d, s40, v4" % XA)
    e("v_add_u32 v%d, s40, v5" % (XA + 1))
    e("v_lshrrev_b32 v6, 2, v2")
    e("v_lshl_add_u32 v6, v3, 3, v6")
    e("v_mul_u32_u24 v6, 192, v6")
    e("v_and_b32 v7, 1, v2")
    e("v_lshl_add_u32 v6, v7, 3, v6")
    e("v_lshrrev_b32 v7, 1, v2")
    e("v_and_b32 v7, 1, v7")
    e("v_and_b32 v8, 1, v3")
    e("v_lshlrev_b32 v8, 1, v8")
    e("v_xor_b32 v7, v7, v8")
    e("v_lshl_add_u32 v6, v7, 4, v6")
    e("v_xor_b32 v7, 32, v6")
    for p in range(3):
        e("s_add_u32 s40, s8, %d" % p)
        e("s_cmp_ge_u32 s40, 3")
        e("s_cselect_b32 s41, 3, 0")
        e("s_sub_u32 s40, s40, s41")
        e("s_mov_b32 s%d, s40" % (44 + p))
        e("s_lshl_b32 s40, s40, 6")
        e("s_add_u32 s40, s40, %d" % W1_LDS)
        e("v_add_u32 v%d, s40, v6" % (WA + 2 * p))
        e("v_add_u32 v%d, s40, v7" % (WA + 2 * p + 1))
    for i in range(48 + 8):
        e("v_mov_b32 v%d, 0" % (ACC + i))
    for i in range(4):
        e("v_mov_b32 v%d, 0x3f803f80" % (ONES + i))

    def a_reads(c, ks, s):
        slot = c % 4
        r = []
        for mu in range(2):
            r.append("ds_read_b128 %s, v%d offset:%d" % (vr(fx(s, mu)), XA + ks, slot * 16384 + mu * 2048))
        for p in range(3):
            for u in range(2):
                for h in range(2):
                    r.append("ds_read_b64_tr_b16 %s, v%d offset:%d" % (vr(fw(s, p, u) + 2 * h, 2), WA + 2 * p + u, slot * 12288 + ks * 6144 + h * 768))
        return r

    def a_mfma(s):
        m = []
        for p in range(3):
            for u in range(2):
                for mu in range(2):
                    m.append("v_mfma_f32_16x16x32_bf16 %s, %s, %s, %s" % (vr(acc(mu, p, u)), vr(fw(s, p, u)), vr(fx(s, mu)), vr(acc(mu, p, u))))
                if p == 0:
                    m.append("v_mfma_f32_16x16x32_bf16 %s, %s, %s, %s" % (vr(CSA + 4 * u), vr(fw(s, 0, u)), vr(ONES), vr(CSA + 4 * u)))
        return m

    PF = opt.get("pf", 1)
    if PF:
        for _ in range(opt.get("np", 1)):
            e("s_barrier")
    stamp(e, opt, 5)
    e("s_barrier")
    if opt.get("pfonly"):
        e("s_endpgm")
    stamp(e, opt, 6)
    for r in a_reads(0, 0, 0):
        e(r)
    e("s_waitcnt lgkmcnt(0)")
    for c in range(NCH):
        for l in interleave(a_mfma(0), a_reads(c, 1, 1), per=2):
            e(l)
        e("s_waitcnt lgkmcnt(0)")
        if c < NCH - 1:
            e("s_barrier")
            for l in interleave(a_mfma(1), a_reads(c + 1, 0, 0), per=2):
                e(l)
            e("s_waitcnt lgkmcnt(0)")
            if c == 3: stamp(e, opt, 7)
            if c == 6: stamp(e, opt, 8)
        else:
            for l in a_mfma(1):
                e(l)
    stamp(e, opt, 9)
    T = 148
    e("v_lshlrev_b32 v6, 4, v3")
    e("s_lshl_b32 s40, s8, 7")
    e("s_add_u32 s40, s40, %d" % CS_LDS)
    e("v_add_u32 v7, s40, v6")
    e("s_lshl_b32 s40, s4, 8")
    e("s_add_u32 s40, s40, %d" % ST_LDS)
    e("v_lshlrev_b32 v8, 2, v2")
    e("v_add_u32 v8, s40, v8")
    for p in range(3):
        e("s_lshl_b32 s40, s%d, 7" % (44 + p))
        e("s_add_u32 s40, s40, %d" % CS_LDS)
        e("v_add_u32 v%d, s40, v6" % (9 + p))
    e("v_lshlrev_b32 v12, 4, v1")
    e("s_mov_b32 exec_lo, 0x00010001")
    e("s_mov_b32 exec_hi, 0x00010001")
    e("s_nop 4")
    e("ds_write_b128 v7, %s" % vr(CSA))
    e("ds_write_b128 v7, %s offset:64" % vr(CSA + 4))
    e("s_mov_b64 exec, -1")
    srd(e, 24, 38, WS_END)
    e("s_waitcnt lgkmcnt(0)")
    e("s_barrier")
    stamp(e, opt, 10)
    for mu in range(2):
        e("ds_read_b32 v%d, v8 offset:%d" % (72 + 2 * mu, mu * 64))
        e("ds_read_b32 v%d, v8 offset:%d" % (76 + 2 * mu, 128 + mu * 64))
    CSR = 80
    for p in range(3):
        for u in range(2):
            e("ds_read_b128 %s, v%d offset:%d" % (vr(CSR + (p * 2 + u) * 4), 9 + p, u * 64))
    e("s_mov_b32 s40, 0x3acccccd")
    e("s_mov_b32 s41, 0x3727c5ac")
    e("s_mov_b32 s42, 0xbfb8aa3b")
    e("v_mov_b32 v104, 1.0")
    e("v_mov_b32 v105, 1.0")
    e("s_waitcnt lgkmcnt(6)")
    for mu in range(2):
        m, q = 72 + 2 * mu, 76 + 2 * mu
        e("v_mul_f32 v%d, s40, v%d" % (m, m))
        e("v_mul_f32 v%d, s40, v%d" % (q, q))
        e("v_fma_f32 v%d, -v%d, v%d, v%d" % (q, m, m, q))
        e("v_add_f32 v%d, s41, v%d" % (q, q))
        e("v_rsq_f32 v%d, v%d" % (q, q))
    e("s_nop 0")
    for mu in range(2):
        q = 76 + 2 * mu
        e("v_mul_f32 v%d, s42, v%d" % (106 + 2 * mu, q))
    e("s_waitcnt lgkmcnt(0)")
    e("s_mul_i32 s40, s7, 96")
    e("s_mul_i32 s41, s6, 3")
    e("s_add_u32 s40, s40, s41")
    TT = 112
    ZZ = 120
    OUT = 128
    n = 0
    for mu in range(2):
        m, r_, rn = 72 + 2 * mu, 76 + 2 * mu, 106 + 2 * mu
        for p in range(3):
            for u in range(2):
                for hh in range(2):
                    a = acc(mu, p, u) + 2 * hh
                    cs = CSR + (p * 2 + u) * 4 + 2 * hh
                    t = TT + u * 4 + hh * 2
                    e("v_pk_fma_f32 %s, %s, %s, %s op_sel_hi:[1,0,1] neg_lo:[0,1,0] neg_hi:[0,1,0]" % (vr(t, 2), vr(cs, 2), vr(m, 2), vr(a, 2)))
            for k in range(4):
                e("v_pk_mul_f32 %s, %s, %s op_sel_hi:[1,0]" % (vr(ZZ + 2 * k, 2), vr(TT + 2 * k, 2), vr(rn, 2)))
            for k in range(8):
                e("v_exp_f32 v%d, v%d" % (ZZ + k, ZZ + k))
            for k in range(4):
                e("v_pk_mul_f32 %s, %s, %s op_sel_hi:[1,0]" % (vr(TT + 2 * k, 2), vr(TT + 2 * k, 2), vr(r_, 2)))
            for k in range(4):
                e("v_pk_add_f32 %s, %s, v[104:105]" % (vr(ZZ + 2 * k, 2), vr(ZZ + 2 * k, 2)))
            for k in range(8):
                e("v_rcp_f32 v%d, v%d" % (ZZ + k, ZZ + k))
            e("s_add_u32 s41, s40, s%d" % (44 + p))
            e("s_add_u32 s41, s41, %d" % (mu * 48))
            e("s_lshl_b32 s41, s41, 10")
            for k in range(4):
                e("v_pk_mul_f32 %s, %s, %s" % (vr(TT + 2 * k, 2), vr(TT + 2 * k, 2), vr(ZZ + 2 * k, 2)))
            o = OUT + 4 * n
            for k in range(4):
                e("v_cvt_pk_bf16_f32 v%d, v%d, v%d" % (o + k, TT + 2 * k, TT + 2 * k + 1))
            e("buffer_store_dwordx4 %s, v12, s[24:27], s41 offen%s" % (vr(o), opt.get("hst", "")))
            n += 1
            if n == opt.get("be2", 4):
                e("s_barrier")
    stamp(e, opt, 11)
    prof_out(e, opt, 0, 12, 3, 24, vb=160)
    e("s_endpgm")

    e("L1_B:")
    e("s_cmp_ge_u32 s3, 8")
    e("s_cbranch_scc1 L1_L")
    ZA = 16
    GA = 40
    FB = [48, 68]
    TW = 88
    XB = 121
    HB = 123
    UW = 125
    UR_ = 112
    UG = 115
    def za(mu, T): return ZA + (mu * 3 + T) * 4
    def bx(s, mu): return FB[s] + mu * 4
    def bh(s, T): return FB[s] + 8 + T * 4
    NPF0 = opt.get("npf0", 3)
    pfq = list(range(10))
    def pf_one():
        pfq.pop(0)
        t = "s_mul_i32 s64, s62, s65\n"
        if opt.get("pfm"):
            t += "s_mov_b64 exec, s[66:67]\nbuffer_load_dword v153, v152, s[8:11], s64 offen\ns_mov_b64 exec, -1\n"
        else:
            t += "buffer_load_dword v153, v152, s[8:11], s64 offen\n"
        t += "s_add_u32 s62, s62, 1\ns_cmp_eq_u32 s62, 10\ns_cselect_b32 s62, 0, s62"
        return t
    if PF:
        if opt.get("rot3"):
            rot_calc(e, opt)
        else:
            e("s_mov_b32 s62, 0")
        e("s_lshr_b32 s40, s2, 3")
        e("s_and_b32 s41, s2, 1")
        e("s_mov_b32 s64, 0")
        e("s_mov_b32 s66, 0x55555555")
        e("s_mov_b32 s67, 0x55555555")
        e("s_cmp_eq_u32 s4, 0")
        e("s_cbranch_scc1 L1_BPX")
        e("s_cmp_eq_u32 s4, 1")
        e("s_cbranch_scc1 L1_BPW")
        e("s_mul_i32 s42, s41, 160")
        e("s_mul_i32 s43, s40, 5")
        e("s_add_u32 s42, s42, s43")
        e("s_mul_i32 s42, s42, 1280")
        e("v_lshrrev_b32 v152, 1, v1")
        e("v_min_u32 v152, 4, v152")
        e("v_mul_u32_u24 v152, 1280, v152")
        e("v_and_b32 v153, 1, v1")
        e("v_lshl_add_u32 v152, v153, 6, v152")
        e("v_add_u32 v152, s42, v152")
        e("s_mov_b32 s65, 128")
        e("s_mov_b32 s66, 0x155")
        e("s_mov_b32 s67, 0")
        e("s_waitcnt lgkmcnt(0)")
        e("s_cmp_eq_u32 s4, 2")
        e("s_cselect_b32 s8, s30, s32")
        e("s_cselect_b32 s9, s31, s33")
        e("s_mov_b32 s10, %d" % (640 * 1280))
        e("s_branch L1_BPJ")
        e("L1_BPW:")
        e("s_lshl_b32 s42, s40, 1")
        e("s_mul_i32 s42, s42, 3072")
        e("s_mul_i32 s43, s41, 1536")
        e("s_add_u32 s42, s42, s43")
        e("v_add_u32 v153, -48, v1")
        e("v_min_u32 v153, v153, v1")
        e("v_cmp_lt_u32 vcc, 23, v153")
        e("v_mov_b32 v154, %d" % (3072 - 24 * 64))
        e("s_mov_b32 s65, 196608")
        e("s_mov_b32 s67, 0x5555")
        e("v_cndmask_b32 v152, 0, v154, vcc")
        e("v_lshl_add_u32 v152, v153, 6, v152")
        e("v_add_u32 v152, s42, v152")
        e("s_waitcnt lgkmcnt(0)")
        e("s_mov_b32 s8, s34")
        e("s_mov_b32 s9, s35")
        e("s_mov_b32 s10, %d" % (640 * 3072))
        e("s_branch L1_BPJ")
        e("L1_BPX:")
        e("s_lshr_b32 s40, s2, 5")
        e("s_and_b32 s41, s40, 1")
        e("s_lshl_b32 s41, s41, 10")
        e("s_lshl_b32 s42, s5, 2")
        e("s_add_u32 s41, s41, s42")
        e("s_lshr_b32 s40, s40, 1")
        e("s_add_u32 s41, s41, s40")
        e("s_mul_i32 s41, s41, 1280")
        e("v_bfe_u32 v152, v1, 1, 4")
        e("v_mul_u32_u24 v152, 0x14000, v152")
        e("v_and_b32 v153, 1, v1")
        e("v_lshl_add_u32 v152, v153, 6, v152")
        e("v_add_u32 v152, s41, v152")
        e("s_mov_b32 s65, 128")
        e("s_mov_b32 s67, 0")
        e("s_waitcnt lgkmcnt(0)")
        e("s_mov_b32 s8, s28")
        e("s_mov_b32 s9, s29")
        e("s_mov_b32 s10, %d" % (2048 * 1280))
        e("L1_BPJ:")
        e("s_mov_b32 s11, 0x00020000")
        for _ in range(NPF0):
            e(pf_one())
        stamp(e, opt, 3)
        if not opt.get("sw"):
            e("s_waitcnt vmcnt(%d)" % opt.get("pfw", NPF0 - 1))
            stamp(e, opt, 4)
            e("s_barrier")
    e("s_lshl_b32 s50, s4, 12")
    e("v_add_u32 v%d, s50, v4" % XB)
    e("v_add_u32 v%d, s50, v5" % (XB + 1))
    e("v_add_u32 v%d, %d, v4" % (HB, H_LDS))
    e("v_add_u32 v%d, %d, v5" % (HB + 1, H_LDS))
    e("v_mul_u32_u24 v6, 1280, v3")
    e("v_lshl_add_u32 v6, v2, 4, v6")
    e("s_lshl_b32 s40, s4, 2")
    e("v_add_u32 v%d, s40, v6" % UW)
    e("s_lshl_b32 s40, s4, 6")
    e("s_mov_b32 s41, 81920")
    for rr in range(3):
        e("s_add_u32 s42, s40, %d" % (rr * 256))
        e("v_add_u32 v6, s42, v1")
        e("v_lshlrev_b32 v%d, 4, v6" % (UR_ + rr))
        e("v_mul_u32_u24 v7, 3277, v6")
        e("v_lshrrev_b32 v7, 16, v7")
        e("v_mul_u32_u24 v8, 20, v7")
        e("v_sub_u32 v8, v6, v8")
        e("v_mul_lo_u32 v7, v7, s41")
        e("v_lshl_add_u32 v%d, v8, 4, v7" % (UG + rr))
    e("v_lshlrev_b32 v6, 8, v3")
    e("v_add_u32 v6, s7, v6")
    e("v_cvt_f32_u32 v6, v6")
    e("v_mul_f32 v6, 0x3a000000, v6")
    e("v_cvt_f32_u32 v7, v2")
    e("v_add_f32 v8, 0x41800000, v7")
    for tau in range(2):
        for j in range(8):
            cj = ((j & 3) + 16 * (j >> 2)) / 32.0
            import struct
            lit = struct.unpack("<I", struct.pack("<f", cj))[0]
            e("v_add_f32 v9, 0x%x, v6" % lit)
            e("v_mul_f32 v9, v9, v%d" % (7 + tau))
            e("v_cos_f32 v%d, v9" % (128 + j))
            e("v_sin_f32 v%d, v9" % (136 + j))
        e("s_nop 0")
        for k in range(4):
            e("v_cvt_pk_bf16_f32 v%d, v%d, v%d" % (TW + tau * 4 + k, 128 + 2 * k, 128 + 2 * k + 1))
            e("v_cvt_pk_bf16_f32 v%d, v%d, v%d" % (TW + 8 + tau * 4 + k, 136 + 2 * k, 136 + 2 * k + 1))
        for k in range(4):
            e("v_xor_b32 v%d, 0x80008000, v%d" % (TW + 16 + tau * 4 + k, TW + tau * 4 + k))
    for i in range(32):
        e("v_mov_b32 v%d, 0" % (ZA + i))
    e("s_waitcnt lgkmcnt(0)")
    stamp(e, opt, 2)
    srd(e, 24, 38, WS_END)

    def b_reads(c, ks, s):
        slot = c % 4
        r = []
        for mu in range(2):
            r.append("ds_read_b128 %s, v%d offset:%d" % (vr(bx(s, mu)), XB + ks, slot * 16384 + mu * 2048))
        for T in range(3):
            r.append("ds_read_b128 %s, v%d offset:%d" % (vr(bh(s, T)), HB + ks, slot * 6144 + T * 2048))
        return r

    def b_mfma(s):
        m = []
        for T in range(3):
            for mu in range(2):
                m.append("v_mfma_f32_16x16x32_bf16 %s, %s, %s, %s" % (vr(za(mu, T)), vr(bx(s, mu)), vr(bh(s, T)), vr(za(mu, T))))
        for mu in range(2):
            m.append("v_mfma_f32_16x16x32_bf16 %s, %s, %s, %s" % (vr(GA + 4 * mu), vr(bx(s, mu)), vr(bx(s, mu)), vr(GA + 4 * mu)))
        return m

    if PF and opt.get("sw"):
        for p in range(opt.get("np", 1)):
            e("s_waitcnt vmcnt(%d)" % (NPF0 - 1))
            if p == 0: stamp(e, opt, 4)
            e("s_barrier")
            e(pf_one())
        e("s_waitcnt vmcnt(%d)" % (NPF0 - 1))
    stamp(e, opt, 5)
    e("s_barrier")
    stamp(e, opt, 6)
    if PF:
        for _ in range(opt.get("npf1", 2)):
            if pfq: e(pf_one())
    if opt.get("pfonly"):
        while pfq:
            e("s_barrier")
            e(pf_one())
        e("s_endpgm")
    for r in b_reads(0, 0, 0):
        e(r)
    e("s_waitcnt lgkmcnt(0)")
    for c in range(NCH):
        for l in interleave(b_mfma(0), b_reads(c, 1, 1), per=2):
            e(l)
        e("s_waitcnt lgkmcnt(0)")
        if c < NCH - 1:
            if PF and opt.get("sw"):
                need = min(9, c + opt.get("swn", 3))
                e("s_waitcnt vmcnt(%d)" % max(0, (10 - len(pfq)) - 1 - need))
            e("s_barrier")
            oth = b_reads(c + 1, 0, 0)
            if PF and pfq:
                oth = [pf_one()] + oth
            for l in interleave(b_mfma(1), oth, per=2):
                e(l)
            e("s_waitcnt lgkmcnt(0)")
            if c == 3: stamp(e, opt, 7)
            if c == 6: stamp(e, opt, 8)
        else:
            for l in b_mfma(1):
                e(l)
    stamp(e, opt, 9)
    if opt.get("bprio", 1):
        e("s_setprio %d" % opt.get("bprio", 1))
    e("s_lshl_b32 s40, s4, 8")
    e("s_add_u32 s40, s40, %d" % ST_LDS)
    e("v_lshlrev_b32 v6, 2, v2")
    e("v_add_u32 v6, s40, v6")
    e("v_lshlrev_b32 v7, 4, v3")
    e("v_add_u32 v7, s40, v7")
    e("s_mov_b32 s58, 0xaaaaaaaa")
    e("s_mov_b32 s59, 0xaaaaaaaa")
    e("s_mov_b32 s60, 0xcccccccc")
    e("s_mov_b32 s61, 0xcccccccc")
    e("s_nop 2")
    for mu in range(2):
        g = GA + 4 * mu
        e("v_cndmask_b32_e64 v8, v%d, v%d, s[58:59]" % (g, g + 1))
        e("v_cndmask_b32_e64 v9, v%d, v%d, s[58:59]" % (g + 2, g + 3))
        e("v_cndmask_b32_e64 v%d, v8, v9, s[60:61]" % (10 + mu))
    e("s_mov_b32 exec_lo, 0x00f0000f")
    e("s_mov_b32 exec_hi, 0xf0000f00")
    for mu in range(2):
        e("ds_write_b32 v6, v%d offset:%d" % (10 + mu, 128 + mu * 64))
    e("s_mov_b32 exec_lo, 0x00100010")
    e("s_mov_b32 exec_hi, 0x00100010")
    for mu in range(2):
        e("ds_write_b128 v7, %s offset:%d" % (vr(za(mu, 2)), mu * 64))
    e("s_mov_b64 exec, -1")
    e("s_waitcnt lgkmcnt(0)")
    e("s_barrier")
    stamp(e, opt, 10)
    SUM = 48
    SQ = 56
    for mu in range(2):
        e("ds_read_b128 %s, v7 offset:%d" % (vr(SUM + 4 * mu), mu * 64))
        e("ds_read_b128 %s, v7 offset:%d" % (vr(SQ + 4 * mu), 128 + mu * 64))
    e("s_mov_b32 s40, 0x3acccccd")
    e("s_mov_b32 s41, 0x3727c5ac")
    e("s_waitcnt lgkmcnt(0)")
    for k in range(8):
        e("v_mul_f32 v%d, s40, v%d" % (SUM + k, SUM + k))
        e("v_mul_f32 v%d, s40, v%d" % (SQ + k, SQ + k))
        e("v_fma_f32 v%d, -v%d, v%d, v%d" % (SQ + k, SUM + k, SUM + k, SQ + k))
        e("v_add_f32 v%d, s41, v%d" % (SQ + k, SQ + k))
        e("v_rsq_f32 v%d, v%d" % (SQ + k, SQ + k))
    e("s_nop 0")
    ZF = 64
    for T in range(3):
        for mu in range(2):
            for hh in range(2):
                a = za(mu, T) + 2 * hh
                e("v_pk_mul_f32 %s, %s, %s" % (vr(a, 2), vr(a, 2), vr(SQ + 4 * mu + 2 * hh, 2)))
        for mu in range(2):
            for hh in range(2):
                a = za(mu, T) + 2 * hh
                e("v_cvt_pk_bf16_f32 v%d, v%d, v%d" % (ZF + 4 * T + 2 * mu + hh, a, a + 1))
    e("s_nop 1")
    def ur(t): return 16 + 4 * t
    def vv(t): return 24 + 4 * t
    def pp(t): return 32 + 4 * t
    def qq(t): return 40 + 4 * t
    def C(t): return TW + 4 * t
    def S(t): return TW + 8 + 4 * t
    def NC(t): return TW + 16 + 4 * t
    M = "v_mfma_f32_16x16x32_bf16 %s, %s, %s, %s"
    for t in range(2):
        e(M % (vr(ur(t)), vr(C(t)), vr(ZF), "0"))
        e(M % (vr(vv(t)), vr(S(t)), vr(ZF), "0"))
        e(M % (vr(pp(t)), vr(C(t)), vr(ZF + 8), "0"))
        e(M % (vr(qq(t)), vr(S(t)), vr(ZF + 8), "0"))
    for t in range(2):
        e(M % (vr(ur(t)), vr(S(t)), vr(ZF + 4), vr(ur(t))))
        e(M % (vr(vv(t)), vr(NC(t)), vr(ZF + 4), vr(vv(t))))
    e("s_mul_i32 s40, s5, 320")
    e("s_mul_i32 s41, s6, 20")
    e("s_add_u32 s40, s40, s41")
    e("s_lshl_b32 s40, s40, 4")
    e("s_add_u32 s40, s40, 0x%x" % WS_U)
    e("s_nop 4")
    OU = 128
    for t in range(2):
        for i in range(4):
            e("v_add_f32_dpp v%d, v%d, v%d row_shl:8 row_mask:0xf bank_mask:0xf bound_ctrl:0" % (48 + 8 * t + i, qq(t) + i, pp(t) + i))
            e("v_subrev_f32_dpp v%d, v%d, v%d row_shl:8 row_mask:0xf bank_mask:0xf bound_ctrl:0" % (52 + 8 * t + i, pp(t) + i, qq(t) + i))
    for t in range(2):
        for i in range(4):
            e("v_cvt_pk_bf16_f32 v%d, v%d, v%d" % (OU + 4 * t + i, ur(t) + i, vv(t) + i))
    for t in range(2):
        for i in range(4):
            e("ds_write_b32 v%d, v%d offset:%d" % (UW, OU + 4 * t + i, (16 * t + i) * 320))
    for t in range(2):
        for i in range(4):
            e("v_cvt_pk_bf16_f32 v%d, v%d, v%d" % (OU + 8 + 4 * t + i, 48 + 8 * t + i, 52 + 8 * t + i))
    e("s_mov_b32 exec_lo, 0x000f000f")
    e("s_mov_b32 exec_hi, 0x000f000f")
    for t in range(2):
        for i in range(4):
            e("ds_write_b32 v%d, v%d offset:%d" % (UW, OU + 8 + 4 * t + i, (16 * t + i) * 320 + 256))
    e("s_mov_b64 exec, -1")
    e("s_waitcnt lgkmcnt(0)")
    e("s_barrier")
    stamp(e, opt, 11)
    e("s_cmp_ge_u32 s4, 2")
    e("ds_read_b128 v[16:19], v%d" % UR_)
    e("ds_read_b128 v[20:23], v%d" % (UR_ + 1))
    e("s_cbranch_scc1 L1_B2")
    e("ds_read_b128 v[24:27], v%d" % (UR_ + 2))
    e("s_waitcnt lgkmcnt(0)")
    e("buffer_store_dwordx4 v[24:27], v%d, s[24:27], s40 offen%s" % (UG + 2, opt.get("ust", "")))
    e("L1_B2:")
    e("s_waitcnt lgkmcnt(0)")
    e("buffer_store_dwordx4 v[16:19], v%d, s[24:27], s40 offen%s" % (UG, opt.get("ust", "")))
    e("buffer_store_dwordx4 v[20:23], v%d, s[24:27], s40 offen%s" % (UG + 1, opt.get("ust", "")))
    stamp(e, opt, 12)
    prof_out(e, opt, 0, 12, 3, 24, vb=160)
    e("s_endpgm")

    e("L1_L:")
    if opt.get("lprio"):
        e("s_setprio %d" % opt["lprio"])
    VX = 112
    VW = 116
    VH = 119
    VH2 = 120
    VW2 = 125
    if opt.get("ls7"):
        e(opt["ls7"])
    e("v_lshrrev_b32 v6, 3, v1")
    e("v_and_b32 v7, 7, v1")
    e("v_xor_b32 v8, v7, v3")
    e("v_lshlrev_b32 v8, 4, v8")
    XS = opt.get("xs", 81920)
    e("s_mov_b32 s40, %d" % XS)
    e("v_mul_lo_u32 v9, v6, s40")
    e("v_add_u32 v9, v9, v8")
    e("s_mul_i32 s41, s7, %d" % opt.get("xr", 1280))
    for q in range(4):
        e("s_add_u32 s42, s41, %d" % (q * 8 * XS - q * 1024))
        if q % 2 == 0:
            e("v_add_u32 v%d, s42, v9" % (VX + q))
        else:
            e("v_xor_b32 v10, 64, v9")
            e("v_add_u32 v%d, s42, v10" % (VX + q))
    e("s_mul_i32 s41, s4, %d" % (16 * 3072))
    e("s_mul_i32 s42, s6, 192")
    e("s_add_u32 s41, s41, s42")
    for i in range(3):
        e("v_add_u32 v10, %d, v1" % (64 * i))
        e("v_mul_u32_u24 v11, 171, v10")
        e("v_lshrrev_b32 v11, 11, v11")
        e("v_mul_u32_u24 v12, 12, v11")
        e("v_sub_u32 v12, v10, v12")
        e("v_lshrrev_b32 v13, 3, v11")
        e("v_lshlrev_b32 v13, 1, v13")
        e("v_xor_b32 v12, v12, v13")
        e("v_mul_u32_u24 v11, 3072, v11")
        e("v_lshl_add_u32 v11, v12, 4, v11")
        e("s_sub_u32 s42, s41, %d" % (i * 1024))
        e("v_add_u32 v%d, s42, v11" % (VW + i))
    e("s_and_b32 s41, s4, 1")
    e("s_mul_i32 s42, s6, 20")
    e("s_lshl_b32 s43, s41, 3")
    e("s_add_u32 s43, s43, s42")
    e("v_add_u32 v10, s43, v6")
    e("v_mov_b32 v11, 320")
    e("v_cmp_eq_u32 vcc, 0, v10")
    e("s_lshl_b32 s43, s41, 6")
    e("v_xor_b32 v12, s43, v8")
    e("v_cndmask_b32 v10, v10, v11, vcc")
    e("v_mul_u32_u24 v10, 1280, v10")
    e("v_add_u32 v%d, v10, v12" % VH)
    e("s_add_u32 s43, s42, 16")
    e("v_add_u32 v10, s43, v6")
    e("v_and_b32 v10, 0x1ff, v10")
    e("s_cmp_eq_u32 s4, 1")
    e("s_cselect_b32 s43, 0, 1280")
    e("v_mul_lo_u32 v10, v10, s43")
    e("s_lshl_b32 s43, s4, 1")
    e("v_add_u32 v11, s43, v3")
    e("v_and_b32 v11, 7, v11")
    e("v_xor_b32 v11, v11, v7")
    e("v_lshl_add_u32 v%d, v11, 4, v10" % VH2)
    e("s_lshl_b32 s50, s4, 12")
    e("s_mul_i32 s51, s4, 3072")
    e("s_add_u32 s51, s51, %d" % W1_LDS)
    e("s_lshl_b32 s52, s4, 10")
    e("s_add_u32 s52, s52, %d" % H_LDS)
    e("s_lshl_b32 s53, s4, 9")
    e("s_add_u32 s53, s53, %d" % (H_LDS + 4096))
    stamp(e, opt, 13)
    e("s_waitcnt lgkmcnt(0)")
    stamp(e, opt, 2)
    srd(e, 8, 28, 2048 * 1280)
    srd(e, 12, 34, 640 * 3072)
    e("s_cmp_ge_u32 s4, 2")
    e("s_cselect_b32 s16, s32, s30")
    e("s_cselect_b32 s17, s33, s31")
    e("s_mov_b32 s18, %d" % (640 * 1280))
    e("s_mov_b32 s19, 0x00020000")
    srd(e, 20, 36, 1536 * 1280)
    srd(e, 24, 38, WS_END2 if opt.get("w2l") else WS_END)

    if opt.get("rot3"):
        rot_calc(e, opt)
    elif opt.get("rot"):
        e(opt["rot"])
    else:
        e("s_mov_b32 s62, 0")
    def dma(c):
        slot = c % 4
        r = []
        pre = "s_add_u32 s63, s62, %d\ns_cmp_ge_u32 s63, 10\ns_cselect_b32 s54, 10, 0\ns_sub_u32 s63, s63, s54\ns_lshl_b32 s54, s63, 7\ns_mul_i32 s55, s63, 196608\n" % c
        r.append(pre + "s_add_u32 m0, s50, %d\ns_nop 0\nbuffer_load_dwordx4 v%d, s[8:11], s54 offen lds" % (slot * 16384, VX))
        for q in range(1, 4):
            r.append("buffer_load_dwordx4 v%d, s[8:11], s54 offen offset:%d lds" % (VX + q, q * 1024))
        r.append("s_add_u32 m0, s51, %d\ns_nop 0\nbuffer_load_dwordx4 v%d, s[12:15], s55 offen lds" % (slot * 12288, VW))
        for i in range(1, 3):
            r.append("buffer_load_dwordx4 v%d, s[12:15], s55 offen offset:%d lds" % (VW + i, i * 1024))
        r.append("s_add_u32 m0, s52, %d\ns_nop 0\nbuffer_load_dwordx4 v%d, s[16:19], s54 offen lds" % (slot * 6144, VH))
        r.append("s_add_u32 m0, s53, %d\ns_mov_b32 exec_hi, 0\nbuffer_load_dwordx4 v%d, s[16:19], s54 offen lds\ns_mov_b32 exec_hi, -1" % (slot * 6144, VH2))
        return r

    issued = []
    queue = []
    if opt.get("nch"):
        NCH = opt["nch"]
    skip = opt.get("skip", [])
    for c in range(NCH):
        for li, l in enumerate(dma(c)):
            if li in skip:
                l = "\n".join(x for x in l.split("\n") if not x.startswith("buffer_load"))
                if l: e_skip = l
                queue.append((c, -1 if c < 4 else c - 3, l + "\ns_nop 0", True))
                continue
            queue.append((c, -1 if c < 4 else c - 3, l, False))
    def take(pos, budget):
        out = []
        n = 0
        while queue and queue[0][1] <= pos and n < budget:
            c, _, t, sk = queue.pop(0)
            out.append(t)
            if not sk:
                issued.append(c)
                n += 1
        return out
    def allowed_after(c):
        last = max(i for i, t in enumerate(issued) if t <= c)
        return len(issued) - 1 - last
    SPF = opt.get("spf", 0)
    spfq = list(range(10))
    def spf_one():
        spfq.pop(0)
        r = []
        for jj in range(4):
            r.append("s_buffer_load_dword s31, s[8:11], s28 offset:%d" % (jj * 81920))
        for t in range(6):
            r.append("s_buffer_load_dword s31, s[12:15], s29 offset:%d" % (t * 128))
            if opt.get("s64"):
                r.append("s_buffer_load_dword s31, s[12:15], s29 offset:%d" % (t * 128 + 64))
        for t in range(3):
            r.append("s_buffer_load_dword s31, s[16:19], s30 offset:%d" % (t * 1280))
        if opt.get("s64"):
            for jj in range(4):
                r.append("s_buffer_load_dword s31, s[8:11], s28 offset:%d" % (jj * 81920 + 64))
            for t in range(3):
                r.append("s_buffer_load_dword s31, s[16:19], s30 offset:%d" % (t * 1280 + 64))
        r.append("s_add_u32 s28, s28, 128\ns_add_u32 s29, s29, 196608\ns_add_u32 s30, s30, 128")
        return r
    if SPF:
        e("s_lshr_b32 s40, s2, 5")
        e("s_and_b32 s41, s40, 1")
        e("s_lshl_b32 s41, s41, 4")
        e("s_lshl_b32 s42, s4, 2")
        e("s_add_u32 s41, s41, s42")
        e("s_lshl_b32 s41, s41, 6")
        e("s_lshl_b32 s42, s5, 2")
        e("s_add_u32 s41, s41, s42")
        e("s_lshr_b32 s40, s40, 1")
        e("s_add_u32 s41, s41, s40")
        e("s_mul_i32 s28, s41, 1280")
        e("s_lshr_b32 s40, s2, 3")
        e("s_lshl_b32 s41, s40, 1")
        e("s_lshr_b32 s42, s4, 1")
        e("s_add_u32 s41, s41, s42")
        e("s_mul_i32 s41, s41, 3072")
        e("s_and_b32 s42, s2, 1")
        e("s_mul_i32 s43, s42, 1536")
        e("s_add_u32 s41, s41, s43")
        e("s_and_b32 s43, s4, 1")
        e("s_mul_i32 s29, s43, 768")
        e("s_add_u32 s29, s29, s41")
        e("s_mul_i32 s42, s42, 160")
        e("s_mul_i32 s40, s40, 5")
        e("s_add_u32 s42, s42, s40")
        e("s_mul_i32 s43, s43, 3")
        e("s_add_u32 s42, s42, s43")
        e("s_mul_i32 s30, s42, 1280")
        for _ in range(SPF):
            for l in spf_one():
                e(l)
        e("s_waitcnt lgkmcnt(0)")
        stamp(e, opt, 13)
        if opt.get("spb"):
            e("s_barrier")
    if PF:
        e("s_barrier")
    for l in take(-1, 9):
        e(l)
    stamp(e, opt, 3)
    if PF:
        for _ in range(opt.get("np", 1) - 1):
            e("s_barrier")
            for l in take(-1, 9):
                e(l)
    for l in take(-1, opt.get("lpre", 18) - 9 * (opt.get("np", 1) if PF else 1)):
        e(l)
    stamp(e, opt, 4)
    W2L = opt.get("w2l", 0)
    if W2L:
        e("s_lshr_b32 s43, s2, 3")
        e("s_cmp_ge_u32 s43, 30")
        e("s_cselect_b32 s47, 30, 0")
        e("s_sub_u32 s43, s43, s47")
        e("s_lshl_b32 s48, s43, 4")
        e("s_lshl_b32 s47, s4, 2")
        e("s_add_u32 s48, s48, s47")
        e("s_and_b32 s49, s2, 1")
        e("s_mul_i32 s49, s49, 640")
        e("s_and_b32 s47, s2, 7")
        e("s_mul_i32 s47, s47, 0x%x" % W2L_SZ)
        e("s_add_u32 s47, s47, 0x%x" % WS_W2L)
        e("v_lshrrev_b32 v10, 2, v1")
        e("v_mul_u32_u24 v10, 1280, v10")
        e("v_and_b32 v11, 3, v1")
        e("v_lshl_add_u32 v%d, v11, 4, v10" % VW2)
        e("s_lshl_b32 s56, s4, 11")
        e("s_add_u32 s59, s56, %d" % (W1_LDS + 2 * 12288))
        e("s_add_u32 s56, s56, %d" % W2S_LDS)
        e("s_lshl_b32 s57, s4, 12")
        e("s_add_u32 s57, s57, %d" % (X_LDS + 2 * 16384))
        e("s_add_u32 s58, s57, 2048")
        e("v_lshrrev_b32 v8, 2, v2")
        e("v_lshl_add_u32 v8, v3, 2, v8")
        e("v_lshlrev_b32 v8, 6, v8")
        e("v_and_b32 v9, 3, v2")
        e("v_lshl_add_u32 v8, v9, 3, v8")
        for r in range(4):
            e("v_add_u32 v%d, s%d, v8" % (12 + r, 56 + r))
        e("v_lshlrev_b32 v9, 4, v1")
    else:
        if opt.get("w2q"):
            e("s_lshr_b32 s43, s2, 3")
            e("s_cmp_ge_u32 s43, 30")
            e("s_cselect_b32 s47, 30, 0")
            e("s_sub_u32 s43, s43, s47")
            e("s_lshl_b32 s43, s43, 2")
            e("s_add_u32 s43, s43, s4")
            e("s_mul_i32 s47, s43, 6554")
            e("s_lshr_b32 s47, s47, 16")
            e("s_mul_i32 s48, s47, 10")
            e("s_sub_u32 s43, s43, s48")
            e("s_lshr_b32 s48, s2, 1")
            e("s_and_b32 s48, s48, 3")
            e("s_mul_i32 s48, s48, 12")
            e("s_add_u32 s48, s48, s47")
            e("s_add_u32 s47, s43, 10")
            e("s_cmp_lt_u32 s43, 5")
            e("s_cselect_b32 s47, s43, s47")
            e("s_add_u32 s43, s43, 5")
            e("s_bitcmp1_b32 s2, 0")
            e("s_cselect_b32 s47, s43, s47")
        else:
            e("s_cmp_ge_u32 s2, 240")
            e("s_cselect_b32 s43, 240, 0")
            e("s_sub_u32 s43, s2, s43")
            e("s_mul_i32 s47, s43, 1366")
            e("s_lshr_b32 s47, s47, 16")
            e("s_mul_i32 s48, s47, 48")
            e("s_sub_u32 s48, s43, s48")
        e("v_lshrrev_b32 v10, 2, v1")
        e("v_mul_u32_u24 v10, 1280, v10")
        e("v_and_b32 v11, 3, v1")
        e("v_lshl_add_u32 v10, v11, 4, v10")
        e("s_mul_i32 s43, s48, %d" % (32 * 1280))
        if opt.get("w2q"):
            e("s_lshl_b32 s49, s47, 6")
            e("s_add_u32 s43, s43, s49")
        else:
            e("s_lshl_b32 s49, s47, 8")
            e("s_add_u32 s43, s43, s49")
            e("s_lshl_b32 s49, s4, 6")
            e("s_add_u32 s43, s43, s49")
        e("v_add_u32 v%d, s43, v10" % VW2)
        e("s_lshl_b32 s56, s4, 11")
        e("s_add_u32 s56, s56, %d" % W2S_LDS)
        e("s_mov_b32 s57, %d" % (16 * 1280 - 1024))
        e("v_lshrrev_b32 v8, 2, v2")
        e("v_lshl_add_u32 v8, v3, 2, v8")
        e("v_lshlrev_b32 v8, 6, v8")
        e("v_and_b32 v9, 3, v2")
        e("v_lshl_add_u32 v8, v9, 3, v8")
        e("v_add_u32 v8, s56, v8")
        e("v_lshlrev_b32 v9, 4, v1")
        if opt.get("w2q"):
            e("s_lshl_b32 s40, s47, 1")
        else:
            e("s_lshl_b32 s40, s47, 3")
            e("s_lshl_b32 s41, s4, 1")
            e("s_add_u32 s40, s40, s41")
        e("s_mul_i32 s40, s40, 48")
        e("s_add_u32 s40, s40, s48")
        e("s_lshl_b32 s40, s40, 10")
        e("s_add_u32 s40, s40, 0x%x" % WS_W2T)
        e("s_add_u32 s41, s40, %d" % (48 * 1024))
    stamp(e, opt, 5)
    e("s_waitcnt vmcnt(%d)" % allowed_after(0))
    e("s_barrier")
    stamp(e, opt, 6)
    W2F = 128
    w2pos = opt.get("w2pos", NCH - 3)
    for c in range(NCH - 1):
        for l in take(c, opt.get("lb0", 9) if c == 0 else opt.get("lb", 12)):
            e(l)
        if SPF and spfq:
            for l in spf_one():
                e(l)
        if c == w2pos and W2L:
            assert not queue and c + 3 == NCH
            for r in range(4):
                e("s_add_u32 s40, s48, %d" % r)
                e("s_mul_i32 s41, s40, 6554")
                e("s_lshr_b32 s41, s41, 16")
                e("s_mul_i32 s42, s41, 10")
                e("s_sub_u32 s42, s40, s42")
                e("s_mul_i32 s43, s41, 40960")
                e("s_lshl_b32 s44, s42, 6")
                e("s_add_u32 s43, s43, s44")
                e("s_add_u32 s43, s43, s49")
                e("s_add_u32 s44, s43, %d" % (16 * 1280 - 1024))
                e("s_mov_b32 m0, s%d" % (56 + r))
                e("s_mul_i32 s42, s42, 96")
                e("buffer_load_dwordx4 v%d, s[20:23], s43 offen lds" % VW2)
                e("buffer_load_dwordx4 v%d, s[20:23], s44 offen offset:1024 lds" % VW2)
                e("s_add_u32 s42, s42, s41")
                e("s_lshl_b32 s42, s42, 10")
                e("s_add_u32 s%d, s42, s47" % (64 + r))
            issued.extend([99] * 8)
        elif c == w2pos:
            assert not queue
            e("s_mov_b32 m0, s56")
            e("s_nop 0")
            e("buffer_load_dwordx4 v%d, s[20:23], 0 offen lds" % VW2)
            e("buffer_load_dwordx4 v%d, s[20:23], s57 offen offset:1024 lds" % VW2)
            issued.extend([99, 99])
        e("s_waitcnt vmcnt(%d)" % allowed_after(c + 1))
        e("s_barrier")
        if c == 0: stamp(e, opt, 10)
        if c == 1: stamp(e, opt, 12)
        if c == (3 if NCH == 10 else 9): stamp(e, opt, 7)
        if c == (6 if NCH == 10 else 14): stamp(e, opt, 8)
    assert not queue
    stamp(e, opt, 9)
    if W2L:
        e("s_barrier")
        e("s_waitcnt vmcnt(0)")
        for r in range(4):
            for t in range(2):
                for hh in range(2):
                    e("ds_read_b64_tr_b16 %s, v%d offset:%d" % (vr(W2F + 8 * r + 4 * t + 2 * hh, 2), 12 + r, hh * 1024 + t * 32))
            e("s_add_u32 s40, s%d, %d" % (64 + r, 48 * 1024))
            e("s_waitcnt lgkmcnt(0)")
            e("buffer_store_dwordx4 %s, v9, s[24:27], s%d offen%s" % (vr(W2F + 8 * r), 64 + r, opt.get("wst", "")))
            e("buffer_store_dwordx4 %s, v9, s[24:27], s40 offen%s" % (vr(W2F + 8 * r + 4), opt.get("wst", "")))
    else:
        e("s_waitcnt vmcnt(0)")
        for t in range(2):
            for hh in range(2):
                e("ds_read_b64_tr_b16 %s, v8 offset:%d" % (vr(W2F + 4 * t + 2 * hh, 2), hh * 1024 + t * 32))
        e("s_waitcnt lgkmcnt(0)")
        e("buffer_store_dwordx4 %s, v9, s[24:27], s40 offen%s" % (vr(W2F), opt.get("wst", "")))
        e("buffer_store_dwordx4 %s, v9, s[24:27], s41 offen%s" % (vr(W2F + 4), opt.get("wst", "")))
    stamp(e, opt, 11)
    prof_out(e, opt, 0, 12, 3, 24, vb=160)
    e("L1_END:")
    e("s_endpgm")
    sp = e.L.index("@@SPLIT")
    if opt.get("lfirst"):
        li = e.L.index("L1_L:")
        lcode = e.L[li:]
        e.L = e.L[:sp] + ["s_cmp_lt_u32 s3, 8", "s_cbranch_scc1 L1_AB"] + lcode + ["L1_AB:"] + e.L[sp + 1:li]
    else:
        del e.L[sp]
    return e.text()


HEAD = """; Kernarg layout for this problem (88 bytes, ptrs only, base s[0:1]):
"""


def kernel_wrap(name, body, vgpr=256, sgpr=102, accum=None):
    accum = accum or vgpr
    txt = ".globl %s\n.p2align 8\n.type %s,@function\n%s:\n%s" % (name, name, name, body)
    desc = """.p2align 6
.amdhsa_kernel %s
  .amdhsa_next_free_vgpr %d
  .amdhsa_next_free_sgpr %d
  .amdhsa_accum_offset %d
  .amdhsa_group_segment_fixed_size 0
  .amdhsa_kernarg_size 88
  .amdhsa_user_sgpr_count 2
  .amdhsa_user_sgpr_kernarg_segment_ptr 1
  .amdhsa_system_sgpr_workgroup_id_x 1
.end_amdhsa_kernel
""" % (name, vgpr, sgpr, accum)
    return txt, desc


DEF = {"hst": "", "rbm": 2, "sym": 1, "wst": " sc1", "ust": " sc1", "pre2": 1, "hb2": 5, "yb2": 9, "ys": 0, "ylate": 2, "yl0": 12, "ys1": 5, "w2q": 1, "krot2": "s_and_b32 s25, s2, 1\ns_mul_i32 s25, s25, 24576", "xc2": 9, "pf": 0, "lprio": 3, "lpre": 18, "lb0": 9, "lb": 12, "rot3": [0, 0, 3, 5]}


def build(opt=None, only_l1=False):
    global PROF_ON
    o = dict(DEF)
    o.update(opt or {})
    opt = o
    PROF_ON = bool(opt.get("prof"))
    k1 = KN + "_kernel"
    k2 = "fnet_l2_kernel"
    launches = ["; @launch kernel=%s grid=(256,1,1) block=(768,1,1) lds=%d" % (k1, L1_LDS)]
    t1, d1 = kernel_wrap(k1, gen_l1(opt), vgpr=168)
    txt = [t1]
    desc = [d1]
    if not only_l1:
        from gen2 import gen_l2, L2_LDS, L2_BLOCK, L2_VGPR, L2_ACC
        launches.append("; @launch kernel=%s grid=(256,1,1) block=(%d,1,1) lds=%d" % (k2, L2_BLOCK, L2_LDS))
        if opt.get("dup2"):
            launches.append(launches[-1])
        t2, d2 = kernel_wrap(k2, gen_l2(opt), vgpr=L2_VGPR, accum=L2_ACC)
        txt.append(t2)
        desc.append(d2)
    s = HEAD + "\n".join(launches) + "\n.amdgcn_target \"amdgcn-amd-amdhsa--gfx950\"\n.text\n" + "\n".join(txt)
    s += ".section .rodata,\"a\"\n" + "".join(desc)
    return s


if __name__ == "__main__":
    only = len(sys.argv) > 1 and sys.argv[1] == "l1"
    s = build({}, only_l1=only)
    out = "cdna_kernels/%s.s" % KN if not only else "l1.s"
    open(out, "w").write(s)
    print("wrote", out, len(s))
```
